```python
import torch

def _softmax(x, axis=-1):
    return torch.softmax(x, dim=axis)
def _gelu(x):
    return torch.nn.functional.gelu(x, approximate="tanh")
def _silu(x):
    return torch.nn.functional.silu(x)
def _sigmoid(x):
    return torch.sigmoid(x)
def _layernorm(x, axis=-1, eps=1e-5):
    m = x.mean(dim=axis, keepdim=True)
    v = x.var(dim=axis, keepdim=True, unbiased=False)
    return (x - m) / torch.sqrt(v + eps)
def _scatter_add(tgt, idx, src, axis=0):
    return tgt.clone().index_add_(axis, idx, src)
def _segment_sum(src, seg, n):
    out = torch.zeros((n,) + src.shape[1:], dtype=src.dtype)
    return out.index_add_(0, seg, src)
def _pad(x, pw):
    flat = tuple(v for pair in reversed(pw) for v in pair)
    return torch.nn.functional.pad(x, flat)

kernel_name = 'standalone__mha_block_cached__near_ridge'

def setup_inputs():

    _w = (lambda a: (lambda t: t.to(torch.bfloat16) if t.is_floating_point() else t)(torch.as_tensor(a)))
    B, Sq, D = 16, 96, 640
    H, Sk, Dh = 32, 1024, 192
    return {
        "x": _w((lambda *s: torch.randn(*s, dtype=torch.bfloat16) * 0.8)(B, Sq, D)),
        "k_cache": _w((lambda *s: torch.randn(*s, dtype=torch.bfloat16) * 0.8)(B, H, Sk, Dh)),
        "v_cache": _w((lambda *s: torch.randn(*s, dtype=torch.bfloat16) * 0.05)(B, H, Sk, Dh)),
        "wq": _w((lambda *s: torch.randn(*s, dtype=torch.bfloat16) * 0.8)(D, H * Dh) * (D ** -0.5)),
        "wo": _w((lambda *s: torch.randn(*s, dtype=torch.bfloat16) * 0.05)(H * Dh, D) * ((H * Dh) ** -0.5)),
    }

def reference(x, k_cache, v_cache, wq, wo):
    B, Sq, D = x.shape
    H, Dh = 32, 192
    q = (lambda x, *d: x.permute(*d))((x @ wq).reshape(B, Sq, H, Dh), 0, 2, 1, 3)
    scores = torch.einsum("bhqd,bhkd->bhqk", q, k_cache) * (Dh ** -0.5)
    p = _softmax(scores, axis=-1)
    o = torch.einsum("bhqk,bhkd->bhqd", p, v_cache)
    return (lambda x, *d: x.permute(*d))(o, 0, 2, 1, 3).reshape(B, Sq, H * Dh) @ wo
```

```python
import math, sys

NAME = "standalone__mha_block_cached__near_ridge"
B, SQ, D, H, SK, DH = 16, 96, 640, 32, 1024, 192
KV_BYTES = B * H * SK * DH * 2
X_BYTES = B * SQ * D * 2
WQ_BYTES = D * H * DH * 2
WO_BYTES = H * DH * D * 2
OUT_BYTES = B * SQ * D * 2
O_BYTES = B * SQ * H * DH * 2
UNIT = 12288
NSLOT = 6
LDS1 = UNIT * NSLOT
CSCALE = (DH ** -0.5) * math.log2(math.e)


class Asm:
    def __init__(self):
        self.l = []
        self.n = 0

    def __call__(self, s):
        self.l.append("    " + s)

    def label(self, s):
        self.l.append(s + ":")

    def c(self, s):
        self.l.append("    ; " + s)

    def newlabel(self, p="L"):
        self.n += 1
        return f"{p}_{self.n}"

    def text(self):
        return "\n".join(self.l) + "\n"


def f32hex(x):
    import struct
    return "0x%08x" % struct.unpack("<I", struct.pack("<f", x))[0]


def vr(a, n):
    return f"v[{a}:{a + n - 1}]"


def srd(a, base, nbytes):
    a(f"s_mov_b32 s{base[0]}, s{base[1]}")
    a(f"s_and_b32 s{base[0] + 1}, s{base[1] + 1}, 0xffff")
    a(f"s_mov_b32 s{base[0] + 2}, {nbytes}")
    a(f"s_mov_b32 s{base[0] + 3}, 0x00020000")


def div24(a, vdst_q, vdst_r, vsrc, vt):
    a(f"v_mul_u32_u24 v{vdst_q}, 2731, v{vsrc}")
    a(f"v_lshrrev_b32 v{vdst_q}, 16, v{vdst_q}")
    a(f"v_mul_u32_u24 v{vt}, 24, v{vdst_q}")
    a(f"v_sub_u32 v{vdst_r}, v{vsrc}, v{vt}")


def gen_attn(a):
    K = "attn_kernel"
    a.l.append(f".globl {K}\n.p2align 8\n.type {K},@function\n{K}:")
    a("s_cmp_ge_u32 s2, 512")
    a("s_cbranch_scc1 A_done")
    a("s_load_dwordx8 s[36:43], s[0:1], 0")
    a("s_load_dwordx2 s[44:45], s[0:1], 56")
    a("v_lshrrev_b32 v1, 6, v0")
    a("v_and_b32 v0, 63, v0")
    a("s_lshr_b32 s4, s2, 5")
    a("s_and_b32 s5, s2, 31")
    a("v_readfirstlane_b32 s3, v1")
    a("s_mul_i32 s6, s2, 393216")
    a("s_waitcnt lgkmcnt(0)")
    srd(a, (8, 38), KV_BYTES)
    srd(a, (12, 40), KV_BYTES)
    srd(a, (16, 42), WQ_BYTES)
    srd(a, (20, 36), X_BYTES)
    srd(a, (24, 44), O_BYTES)
    a("s_cmp_eq_u32 s3, 3")
    a("s_cbranch_scc1 A_loader")

    KB, VBE, VBO, WBE, WBO = 8, 12, 13, 14, 15
    KA, VA = 16, 20
    VM, VL, VMC = 22, 23, 24
    QF, O, S, P, F = 32, 80, 176, 192, 200
    XF = 176
    WOFF, XOFF = 248, 252
    a.c("lane decomposition")
    a("v_and_b32 v1, 31, v0")
    a("v_lshrrev_b32 v2, 5, v0")
    a("v_and_b32 v3, 15, v0")
    a("v_bfe_u32 v4, v0, 4, 1")
    a("v_lshrrev_b32 v5, 2, v3")
    a("v_and_b32 v6, 3, v3")
    a("v_bfe_u32 v7, v1, 1, 3")
    a("v_xor_b32 v25, v2, v7")
    a("v_mul_u32_u24 v26, 384, v1")
    for i in range(4):
        a(f"v_xor_b32 v27, {2 * i}, v25")
        a(f"v_lshl_add_u32 v{KB + i}, v27, 4, v26")
    a("v_lshl_add_u32 v25, v2, 2, v5")
    a("v_mul_u32_u24 v25, 384, v25")
    a("v_lshrrev_b32 v26, 1, v6")
    a("v_lshl_add_u32 v26, v4, 1, v26")
    a("v_lshl_add_u32 v25, v26, 4, v25")
    a("v_and_b32 v26, 1, v6")
    a("v_lshl_add_u32 v25, v26, 3, v25")
    a("v_lshrrev_b32 v26, 1, v5")
    a("v_lshlrev_b32 v26, 6, v26")
    a(f"v_add_u32 v{VBE}, v25, v26")
    a(f"v_sub_u32 v{VBO}, v25, v26")
    a("v_lshl_add_u32 v25, v2, 3, v5")
    a("v_mul_u32_u24 v25, 384, v25")
    a("v_and_b32 v27, 1, v6")
    a("v_lshl_add_u32 v27, v4, 1, v27")
    a("v_lshl_add_u32 v25, v27, 4, v25")
    a("v_lshrrev_b32 v27, 1, v6")
    a("v_lshl_add_u32 v25, v27, 3, v25")
    a(f"v_add_u32 v25, {3 * UNIT}, v25")
    a(f"v_add_u32 v{WBE}, v25, v26")
    a(f"v_sub_u32 v{WBO}, v25, v26")
    a("s_lshl_b32 s7, s3, 8")
    for jj in range(4):
        a(f"v_add_u32 v25, s7, v0")
        if jj:
            a(f"v_add_u32 v25, {64 * jj}, v25")
        div24(a, 26, 27, 25, 28)
        a("v_bfe_u32 v28, v26, 1, 1")
        a("v_lshlrev_b32 v28, 2, v28")
        a("v_xor_b32 v27, v27, v28")
        a("v_mul_u32_u24 v26, 12288, v26")
        a(f"v_lshl_add_u32 v{WOFF + jj}, v27, 4, v26")
    a("s_lshl_b32 s7, s3, 5")
    a("v_add_u32 v25, s7, v1")
    a("v_mul_u32_u24 v25, 1280, v25")
    a(f"v_lshl_add_u32 v{XOFF}, v2, 4, v25")
    a("s_mul_i32 s28, s4, 122880")
    a("s_mul_i32 s29, s5, 384")
    a("s_lshl_b32 s30, s3, 12")

    def issue_wq(t):
        slot = 3 + t % 3
        a(f"s_add_u32 s31, s29, {t * 32 * 12288}")
        for jj in range(4):
            a(f"s_add_u32 m0, s30, {slot * UNIT + jj * 1024}")
            a("s_nop 0")
            a(f"buffer_load_dwordx4 v{WOFF + jj}, s[16:19], s31 offen lds")
        for k2 in range(2):
            a(f"buffer_load_dwordx4 {vr(XF + (t % 3) * 8 + 4 * k2, 4)}, v{XOFF}, s[20:23], s28 offen offset:{(2 * t + k2) * 32}")

    issue_wq(0)
    issue_wq(1)
    for t in range(20):
        slot = 3 + t % 3
        a(f"s_waitcnt vmcnt({6 if t < 19 else 0})")
        a("s_barrier")
        if t + 2 < 20:
            issue_wq(t + 2)
        for k2 in range(2):
            for T in range(6):
                base = WBE if T % 2 == 0 else WBO
                for rd in range(2):
                    off = (slot - 3) * UNIT + (16 * k2 + 4 * rd) * 384 + 64 * T
                    a(f"ds_read_b64_tr_b16 {vr(F + (k2 * 6 + T) * 4 + 2 * rd, 2)}, v{base} offset:{off}")
        n = 0
        for k2 in range(2):
            for T in range(6):
                n += 1
                a(f"s_waitcnt lgkmcnt({min(15, 24 - 2 * n)})")
                c = "0" if (t == 0 and k2 == 0) else vr(O + 16 * T, 16)
                a(f"v_mfma_f32_32x32x16_bf16 {vr(O + 16 * T, 16)}, {vr(F + (k2 * 6 + T) * 4, 4)}, {vr(XF + (t % 3) * 8 + 4 * k2, 4)}, {c}")
    a("s_nop 15")
    for T in range(6):
        for j in range(2):
            for e in range(4):
                a(f"v_cvt_pk_bf16_f32 v{QF + (2 * T + j) * 4 + e}, v{O + 16 * T + 8 * j + 2 * e}, v{O + 16 * T + 8 * j + 2 * e + 1}")
    for i in range(96):
        a(f"v_mov_b32 v{O + i}, 0")
    a(f"v_mov_b32 v{VM}, 0xff800000")
    a(f"v_mov_b32 v{VL}, 0")
    a(f"s_mov_b32 s32, {f32hex(CSCALE)}")
    a("s_mov_b32 s33, 0")
    a("s_mov_b32 s34, 0")
    a.label("A_loop")
    a("s_barrier")
    for i in range(4):
        a(f"v_add_u32 v{KA + i}, s33, v{KB + i}")
    a("s_add_u32 s35, s33, 12288")
    for ks in range(12):
        a(f"ds_read_b128 {vr(F + 4 * ks, 4)}, v{KA + (ks & 3)} offset:{128 * (ks >> 2)}")
    a(f"v_add_u32 v{VA}, s35, v{VBE}")
    a(f"v_add_u32 v{VA + 1}, s35, v{VBO}")
    for ks in range(12):
        a(f"s_waitcnt lgkmcnt({11 - ks})")
        c = "0" if ks == 0 else vr(S, 16)
        a(f"v_mfma_f32_32x32x16_bf16 {vr(S, 16)}, {vr(F + 4 * ks, 4)}, {vr(QF + 4 * ks, 4)}, {c}")
    a("s_barrier")
    for T in range(6):
        for j in range(2):
            for rd in range(2):
                off = (16 * j + 8 * rd) * 384 + 64 * T
                a(f"ds_read_b64_tr_b16 {vr(F + (T * 2 + j) * 4 + 2 * rd, 2)}, v{VA + (T & 1)} offset:{off}")
    a("s_nop 4")
    a(f"v_max3_f32 v25, v{S}, v{S + 1}, v{VM}")
    for k in range(2, 16, 2):
        a(f"v_max3_f32 v25, v{S + k}, v{S + k + 1}, v25")
    a("v_mov_b32 v26, v25")
    a("s_nop 1")
    a("v_permlane32_swap_b32 v25, v26")
    a("v_max_f32 v25, v25, v26")
    a(f"v_cmp_gt_f32 vcc, v25, v{VM}")
    a(f"v_mul_f32 v{VMC}, s32, v25")
    a("s_cbranch_vccz A_norescale")
    a(f"v_sub_f32 v26, v{VM}, v25")
    a("v_mul_f32 v26, s32, v26")
    a("v_exp_f32 v26, v26")
    a("s_nop 0")
    a(f"v_mul_f32 v{VL}, v{VL}, v26")
    for i in range(96):
        a(f"v_mul_f32 v{O + i}, v{O + i}, v26")
    a.label("A_norescale")
    a(f"v_mov_b32 v{VM}, v25")
    for k in range(16):
        a(f"v_fma_f32 v{S + k}, v{S + k}, s32, -v{VMC}")
    for k in range(16):
        a(f"v_exp_f32 v{S + k}, v{S + k}")
    a("s_nop 0")
    for e in range(8):
        a(f"v_cvt_pk_bf16_f32 v{P + e}, v{S + 2 * e}, v{S + 2 * e + 1}")
    for k in range(0, 16, 2):
        a(f"v_add_f32 v{S + k}, v{S + k}, v{S + k + 1}")
    for k in range(0, 16, 4):
        a(f"v_add_f32 v{S + k}, v{S + k}, v{S + k + 2}")
    a(f"v_add_f32 v{S}, v{S}, v{S + 4}")
    a(f"v_add_f32 v{S + 8}, v{S + 8}, v{S + 12}")
    a(f"v_add_f32 v{S}, v{S}, v{S + 8}")
    a(f"v_add_f32 v{VL}, v{VL}, v{S}")
    n = 0
    for T in range(6):
        for j in range(2):
            n += 1
            a(f"s_waitcnt lgkmcnt({min(15, 24 - 2 * n)})")
            a(f"v_mfma_f32_32x32x16_bf16 {vr(O + 16 * T, 16)}, {vr(F + (T * 2 + j) * 4, 4)}, {vr(P + 4 * j, 4)}, {vr(O + 16 * T, 16)}")
    a("s_add_u32 s33, s33, 24576")
    a("s_cmp_eq_u32 s33, 73728")
    a("s_cselect_b32 s33, 0, s33")
    a("s_add_u32 s34, s34, 1")
    a("s_cmp_lt_u32 s34, 32")
    a("s_cbranch_scc1 A_loop")
    a(f"v_mov_b32 v26, v{VL}")
    a("s_nop 1")
    a(f"v_permlane32_swap_b32 v{VL}, v26")
    a(f"v_add_f32 v{VL}, v{VL}, v26")
    a(f"v_rcp_f32 v26, v{VL}")
    a("s_mul_i32 s7, s4, 96")
    a("s_lshl_b32 s35, s3, 5")
    a("s_add_u32 s7, s7, s35")
    a("v_add_u32 v27, s7, v1")
    a("s_mov_b32 s7, 12288")
    a("v_mul_lo_u32 v27, v27, s7")
    a("v_lshl_add_u32 v27, v2, 4, v27")
    a("s_nop 7")
    for T in range(6):
        for g in range(4):
            for e in range(2):
                r = O + 16 * T + 4 * g + 2 * e
                a(f"v_mul_f32 v{r}, v{r}, v26")
                a(f"v_mul_f32 v{r + 1}, v{r + 1}, v26")
        for g in range(4):
            for e in range(2):
                r = O + 16 * T + 4 * g + 2 * e
                a(f"v_cvt_pk_bf16_f32 v{F + 8 * T + 2 * g + e}, v{r}, v{r + 1}")
        a("s_nop 1")
        for g in (0, 2):
            d = F + 8 * T + 2 * g
            a(f"v_permlane32_swap_b32 v{d}, v{d + 2}")
            a(f"v_permlane32_swap_b32 v{d + 1}, v{d + 3}")
        for g in (0, 2):
            d = F + 8 * T + 2 * g
            a(f"buffer_store_dwordx4 {vr(d, 4)}, v27, s[24:27], s29 offen offset:{64 * T + 16 * g}")
    a("s_endpgm")

    a.label("A_loader")
    OK, OV = 32, 44
    for j in range(12):
        a(f"v_add_u32 v25, {64 * j}, v0")
        div24(a, 26, 27, 25, 28)
        a("v_bfe_u32 v28, v26, 1, 3")
        a("v_xor_b32 v29, v27, v28")
        a("v_bfe_u32 v28, v26, 1, 1")
        a("v_lshlrev_b32 v28, 2, v28")
        a("v_xor_b32 v30, v27, v28")
        a("v_mul_u32_u24 v26, 384, v26")
        a(f"v_lshl_add_u32 v{OK + j}, v29, 4, v26")
        a(f"v_lshl_add_u32 v{OV + j}, v30, 4, v26")

    def issue_unit(isv, ssoff, sslot):
        for j in range(12):
            a(f"s_add_u32 m0, s{sslot}, {j * 1024}")
            a("s_nop 0")
            if isv:
                a(f"buffer_load_dwordx4 v{OV + j}, s[12:15], s{ssoff} offen lds")
            else:
                a(f"buffer_load_dwordx4 v{OK + j}, s[8:11], s{ssoff} offen lds")

    a("s_mov_b32 s30, s6")
    a("s_mov_b32 s31, 0")
    issue_unit(0, 30, 31)
    a("s_mov_b32 s31, 12288")
    issue_unit(1, 30, 31)
    a("s_add_u32 s30, s30, 12288")
    a("s_mov_b32 s31, 24576")
    issue_unit(0, 30, 31)
    for t in range(20):
        a("s_barrier")
    a("s_waitcnt vmcnt(24)")
    a("s_barrier")
    a("s_mov_b32 s31, 36864")
    issue_unit(1, 30, 31)
    a("s_add_u32 s30, s30, 12288")
    a("s_mov_b32 s31, 49152")
    issue_unit(0, 30, 31)
    a("s_mov_b32 s31, 61440")
    issue_unit(1, 30, 31)
    a("s_add_u32 s30, s30, 12288")
    a("s_mov_b32 s31, 0")
    a("s_mov_b32 s34, 0")
    a.label("A_lloop")
    a("s_waitcnt vmcnt(48)")
    a("s_barrier")
    issue_unit(0, 30, 31)
    a("s_add_u32 s31, s31, 12288")
    a("s_waitcnt vmcnt(48)")
    a("s_barrier")
    issue_unit(1, 30, 31)
    a("s_add_u32 s30, s30, 12288")
    a("s_add_u32 s31, s31, 12288")
    a("s_cmp_eq_u32 s31, 73728")
    a("s_cselect_b32 s31, 0, s31")
    a("s_add_u32 s34, s34, 1")
    a("s_cmp_lt_u32 s34, 29")
    a("s_cbranch_scc1 A_lloop")
    for u in range(59, 64):
        a(f"s_waitcnt vmcnt({(63 - u) * 12})")
        a("s_barrier")
    a.label("A_done")
    a("s_endpgm")


NCH = 8
LDS2 = 4 * NCH * 4096


def gen_oproj(a):
    K = "oproj_kernel"
    a.l.append(f".globl {K}\n.p2align 8\n.type {K},@function\n{K}:")
    a("s_cmp_ge_u32 s2, 240")
    a("s_cbranch_scc1 B_done")
    a("s_load_dwordx4 s[36:39], s[0:1], 32")
    a("s_load_dwordx2 s[44:45], s[0:1], 56")
    a("v_lshrrev_b32 v1, 6, v0")
    a("v_and_b32 v0, 63, v0")
    a("s_and_b32 s4, s2, 7")
    a("s_lshr_b32 s5, s2, 3")
    a("v_readfirstlane_b32 s3, v1")
    a("s_mul_i32 s6, s5, 205")
    a("s_lshr_b32 s6, s6, 11")
    a("s_mul_i32 s7, s6, 10")
    a("s_sub_u32 s7, s5, s7")
    a("s_mul_i32 s4, s4, 3")
    a("s_add_u32 s6, s6, s4")
    a("s_waitcnt lgkmcnt(0)")
    srd(a, (8, 36), WO_BYTES)
    srd(a, (12, 44), O_BYTES)
    srd(a, (16, 38), OUT_BYTES)
    ACC, OF, AF = 64, 128, 32
    WOFF, OOFF, RBE, RBO = 8, 12, 14, 15
    a("v_and_b32 v1, 31, v0")
    a("v_lshrrev_b32 v2, 5, v0")
    a("v_and_b32 v3, 15, v0")
    a("v_bfe_u32 v4, v0, 4, 1")
    a("v_lshrrev_b32 v5, 2, v3")
    a("v_and_b32 v6, 3, v3")
    for jj in range(4):
        a(f"v_add_u32 v25, {64 * jj}, v0")
        a("v_lshrrev_b32 v26, 3, v25")
        a("v_and_b32 v27, 7, v25")
        a("v_bfe_u32 v28, v26, 1, 1")
        a("v_lshlrev_b32 v28, 2, v28")
        a("v_xor_b32 v27, v27, v28")
        a("v_mul_u32_u24 v26, 1280, v26")
        a(f"v_lshl_add_u32 v{WOFF + jj}, v27, 4, v26")
    a("v_lshl_add_u32 v25, v2, 3, v5")
    a("v_lshlrev_b32 v25, 7, v25")
    a("v_lshrrev_b32 v26, 1, v6")
    a("v_lshl_add_u32 v26, v4, 1, v26")
    a("v_lshl_add_u32 v25, v26, 4, v25")
    a("v_and_b32 v26, 1, v6")
    a("v_lshl_add_u32 v25, v26, 3, v25")
    a(f"s_mul_i32 s20, s3, {NCH * 4096}")
    a("v_add_u32 v25, s20, v25")
    a("v_lshrrev_b32 v26, 1, v5")
    a("v_lshlrev_b32 v26, 6, v26")
    a(f"v_add_u32 v{RBE}, v25, v26")
    a(f"v_sub_u32 v{RBO}, v25, v26")
    a("s_lshl_b32 s21, s6, 6")
    a("v_add_u32 v25, s21, v1")
    a("s_mov_b32 s22, 12288")
    a("v_mul_lo_u32 v25, v25, s22")
    a(f"v_lshl_add_u32 v{OOFF}, v2, 4, v25")
    a(f"v_add_u32 v{OOFF + 1}, {32 * 12288}, v{OOFF}")
    a("s_mul_i32 s23, s3, 1966080")
    a("s_lshl_b32 s24, s7, 7")
    a("s_add_u32 s23, s23, s24")
    a("s_mul_i32 s24, s3, 3072")

    def issue(slot):
        for jj in range(4):
            a(f"s_add_u32 m0, s20, {slot * 4096 + jj * 1024}")
            a("s_nop 0")
            a(f"buffer_load_dwordx4 v{WOFF + jj}, s[8:11], s23 offen lds")
        for k2 in range(2):
            for tt in range(2):
                a(f"buffer_load_dwordx4 {vr(OF + slot * 16 + (k2 * 2 + tt) * 4, 4)}, v{OOFF + tt}, s[12:15], s24 offen offset:{k2 * 32}")
        a("s_add_u32 s23, s23, 40960")
        a("s_add_u32 s24, s24, 64")

    for i in range(64):
        a(f"v_mov_b32 v{ACC + i}, 0")
    for s in range(NCH - 1):
        issue(s)
    a("s_mov_b32 s25, 0")
    a.label("B_loop")
    for s in range(NCH):
        a(f"s_waitcnt vmcnt({8 * (NCH - 2)})")
        issue((s + NCH - 1) % NCH)
        for k2 in range(2):
            for T in range(2):
                base = RBE if T == 0 else RBO
                for rd in range(2):
                    off = s * 4096 + (16 * k2 + 4 * rd) * 128 + 64 * T
                    a(f"ds_read_b64_tr_b16 {vr(AF + (k2 * 2 + T) * 4 + 2 * rd, 2)}, v{base} offset:{off}")
        for k2 in range(2):
            for T in range(2):
                a(f"s_waitcnt lgkmcnt({8 - 2 * (k2 * 2 + T + 1)})")
                for tt in range(2):
                    acc = ACC + (T * 2 + tt) * 16
                    a(f"v_mfma_f32_32x32x16_bf16 {vr(acc, 16)}, {vr(AF + (k2 * 2 + T) * 4, 4)}, {vr(OF + s * 16 + (k2 * 2 + tt) * 4, 4)}, {vr(acc, 16)}")
    a("s_add_u32 s25, s25, 1")
    a(f"s_cmp_lt_u32 s25, {48 // NCH}")
    a("s_cbranch_scc1 B_loop")
    a("s_waitcnt vmcnt(0)")
    a("s_barrier")
    a("v_lshlrev_b32 v25, 4, v0")
    a("s_lshl_b32 s21, s3, 14")
    a("v_add_u32 v26, s21, v25")
    a("s_nop 7")
    for i in range(16):
        a(f"ds_write_b128 v26, {vr(ACC + 4 * i, 4)} offset:{i * 1024}")
    a("s_waitcnt lgkmcnt(0)")
    a("s_barrier")
    a("s_lshl_b32 s21, s3, 12")
    a("v_add_u32 v26, s21, v25")
    for w in range(4):
        for g in range(4):
            a(f"ds_read_b128 {vr(ACC + 16 * w + 4 * g, 4)}, v26 offset:{w * 16384 + g * 1024}")
    a("s_waitcnt lgkmcnt(0)")
    for i in range(16):
        a(f"v_add_f32 v{ACC + i}, v{ACC + i}, v{ACC + 16 + i}")
        a(f"v_add_f32 v{ACC + 32 + i}, v{ACC + 32 + i}, v{ACC + 48 + i}")
    for i in range(16):
        a(f"v_add_f32 v{ACC + i}, v{ACC + i}, v{ACC + 32 + i}")
    for g in range(4):
        for e in range(2):
            a(f"v_cvt_pk_bf16_f32 v{AF + 2 * g + e}, v{ACC + 4 * g + 2 * e}, v{ACC + 4 * g + 2 * e + 1}")
    a("s_lshr_b32 s21, s3, 1")
    a("s_and_b32 s22, s3, 1")
    a("s_lshl_b32 s23, s6, 6")
    a("s_lshl_b32 s22, s22, 5")
    a("s_add_u32 s23, s23, s22")
    a("v_add_u32 v25, s23, v1")
    a("v_mul_u32_u24 v25, 1280, v25")
    a("v_lshl_add_u32 v25, v2, 4, v25")
    a("s_lshl_b32 s23, s7, 7")
    a("s_lshl_b32 s21, s21, 6")
    a("s_add_u32 s23, s23, s21")
    for g in (0, 2):
        d = AF + 2 * g
        a(f"v_permlane32_swap_b32 v{d}, v{d + 2}")
        a(f"v_permlane32_swap_b32 v{d + 1}, v{d + 3}")
    for g in (0, 2):
        d = AF + 2 * g
        a(f"buffer_store_dwordx4 {vr(d, 4)}, v25, s[16:19], s23 offen offset:{16 * g}")
    a.label("B_done")
    a("s_endpgm")


def descriptor(name, vgpr):
    return f""".p2align 6
.amdhsa_kernel {name}
  .amdhsa_next_free_vgpr {vgpr}
  .amdhsa_next_free_sgpr 64
  .amdhsa_accum_offset {vgpr}
  .amdhsa_group_segment_fixed_size 0
  .amdhsa_kernarg_size 64
  .amdhsa_user_sgpr_count 2
  .amdhsa_user_sgpr_kernarg_segment_ptr 1
  .amdhsa_system_sgpr_workgroup_id_x 1
.end_amdhsa_kernel
"""


def main():
    ref = open(f"cdna_kernels/{NAME}.s.ref").read().splitlines()
    head = [l for l in ref if l.startswith(";") and "@launch" not in l and "Override" not in l and "grid=ceil" not in l]
    a = Asm()
    out = "\n".join(head) + "\n"
    out += f"; @launch kernel=attn_kernel grid=(512,1,1) block=(256,1,1) lds={LDS1}\n"
    out += f"; @launch kernel=oproj_kernel grid=(240,1,1) block=(256,1,1) lds={LDS2}\n"
    out += '.amdgcn_target "amdgcn-amd-amdhsa--gfx950"\n.text\n'
    gen_attn(a)
    gen_oproj(a)
    out += a.text()
    out += '.section .rodata,"a"\n'
    out += descriptor("attn_kernel", 256)
    out += descriptor("oproj_kernel", 256)
    dst = sys.argv[1] if len(sys.argv) > 1 else f"cdna_kernels/{NAME}.s"
    open(dst, "w").write(out)


if __name__ == "__main__":
    main()
```

```python
import math, sys, os
FLAGS = os.environ.get("GENFLAGS", "").split(",")

NAME = "standalone__mha_block_cached__near_ridge"
B, SQ, D, H, SK, DH = 16, 96, 640, 32, 1024, 192
KV_BYTES = B * H * SK * DH * 2
X_BYTES = B * SQ * D * 2
WQ_BYTES = D * H * DH * 2
WO_BYTES = H * DH * D * 2
OUT_BYTES = B * SQ * D * 2
O_BYTES = B * SQ * H * DH * 2
UNIT = 12288
NSLOT = 6
LDS1 = UNIT * NSLOT
WQF = os.environ.get("WQF", "")
if WQF: WQF += " "
NT = "nt " if "nt" in FLAGS else ""
CSCALE = (DH ** -0.5) * math.log2(math.e)


class Asm:
    def __init__(self):
        self.l = []
        self.n = 0

    def __call__(self, s):
        self.l.append("    " + s)

    def label(self, s):
        self.l.append(s + ":")

    def c(self, s):
        self.l.append("    ; " + s)

    def newlabel(self, p="L"):
        self.n += 1
        return f"{p}_{self.n}"

    def text(self):
        return "\n".join(self.l) + "\n"


def f32hex(x):
    import struct
    return "0x%08x" % struct.unpack("<I", struct.pack("<f", x))[0]


def vr(a, n):
    return f"v[{a}:{a + n - 1}]"


def srd(a, base, nbytes):
    a(f"s_mov_b32 s{base[0]}, s{base[1]}")
    a(f"s_and_b32 s{base[0] + 1}, s{base[1] + 1}, 0xffff")
    a(f"s_mov_b32 s{base[0] + 2}, {nbytes}")
    a(f"s_mov_b32 s{base[0] + 3}, 0x00020000")


def div24(a, vdst_q, vdst_r, vsrc, vt):
    a(f"v_mul_u32_u24 v{vdst_q}, 2731, v{vsrc}")
    a(f"v_lshrrev_b32 v{vdst_q}, 16, v{vdst_q}")
    a(f"v_mul_u32_u24 v{vt}, 24, v{vdst_q}")
    a(f"v_sub_u32 v{vdst_r}, v{vsrc}, v{vt}")


class LdsQ:
    def __init__(self, a):
        self.a = a
        self.q = []

    def issue(self, tag, text):
        self.a(text)
        self.q.append(tag)

    def need(self, tag):
        idx = max((i for i, t in enumerate(self.q) if t == tag), default=-1)
        if idx < 0:
            return
        n = len(self.q) - 1 - idx
        self.a(f"s_waitcnt lgkmcnt({min(n, 15)})")
        self.q = self.q[idx + 1:] if n <= 15 else self.q[len(self.q) - 15:]

    def drain(self):
        self.a("s_waitcnt lgkmcnt(0)")
        self.q = []


RING = 9
R1 = int(os.environ.get("R1", "8"))
RINGB = RING * UNIT
STG = 16384
LDS1 = RINGB + 3 * STG


def gen_attn(a):
    K = "attn_kernel"
    a.l.append(f".globl {K}\n.p2align 8\n.type {K},@function\n{K}:")
    a("s_cmp_ge_u32 s2, 256")
    a("s_cbranch_scc1 A_done")
    a("s_load_dwordx8 s[36:43], s[0:1], 0")
    a("s_load_dwordx2 s[44:45], s[0:1], 56")
    a("v_lshrrev_b32 v1, 6, v0")
    a("v_and_b32 v0, 63, v0")
    a("s_lshr_b32 s4, s2, 5")
    a("s_and_b32 s5, s2, 7")
    a("s_lshl_b32 s5, s5, 2")
    a("s_bfe_u32 s7, s2, 0x20003")
    a("s_add_u32 s5, s5, s7")
    a("v_readfirstlane_b32 s3, v1")
    a("s_lshr_b32 s57, s2, 3")
    a("s_mul_i32 s57, s57, 5")
    a("s_lshr_b32 s57, s57, 3")
    a("s_mov_b32 s57, 0")
    a("s_lshl_b32 s6, s4, 5")
    a("s_add_u32 s6, s6, s5")
    a("s_mul_i32 s6, s6, 393216")
    a("s_waitcnt lgkmcnt(0)")
    srd(a, (8, 38), KV_BYTES)
    srd(a, (12, 40), KV_BYTES)
    srd(a, (16, 42), WQ_BYTES)
    srd(a, (20, 36), X_BYTES)
    srd(a, (24, 44), O_BYTES)
    if "stamp" in FLAGS:
        a("s_memrealtime s[50:51]")
    a("s_cmp_eq_u32 s3, 3")
    a("s_cbranch_scc1 A_loadK")
    a("s_cmp_eq_u32 s3, 7")
    a("s_cbranch_scc1 A_loadV")
    a("s_cmp_ge_u32 s3, 4")
    a("s_cbranch_scc1 A_qwave")

    KB, VBE, VBO = 4, 8, 9
    KA, VA = 10, 14
    VM, VL, VMC, VAL = 16, 17, 18, 19
    T0, T1, T2, T3 = 20, 21, 22, 23
    QF, O, SA, SB, P, KF, VF = 24, 72, 168, 184, 200, 208, 232
    QRD = 1
    L = LdsQ(a)
    a("s_setprio 2")
    q_, hf_, lp_, g1_, rr_, cc_, t5, t6, t7, t8 = range(KF, KF + 10)
    a(f"v_and_b32 v{q_}, 31, v0")
    a(f"v_lshrrev_b32 v{hf_}, 5, v0")
    a(f"v_and_b32 v{lp_}, 15, v0")
    a(f"v_bfe_u32 v{g1_}, v0, 4, 1")
    a(f"v_lshrrev_b32 v{rr_}, 2, v{lp_}")
    a(f"v_and_b32 v{cc_}, 3, v{lp_}")
    a(f"v_bfe_u32 v{t5}, v{q_}, 1, 3")
    a(f"v_xor_b32 v{t5}, v{hf_}, v{t5}")
    a(f"v_mul_u32_u24 v{t6}, 384, v{q_}")
    for i in range(4):
        a(f"v_xor_b32 v{t7}, {2 * i}, v{t5}")
        a(f"v_lshl_add_u32 v{KB + i}, v{t7}, 4, v{t6}")
    a(f"v_lshl_add_u32 v{t5}, v{hf_}, 2, v{rr_}")
    a(f"v_mul_u32_u24 v{t5}, 384, v{t5}")
    a(f"v_lshrrev_b32 v{t6}, 1, v{cc_}")
    a(f"v_lshl_add_u32 v{t6}, v{g1_}, 1, v{t6}")
    a(f"v_lshl_add_u32 v{t5}, v{t6}, 4, v{t5}")
    a(f"v_and_b32 v{t6}, 1, v{cc_}")
    a(f"v_lshl_add_u32 v{t5}, v{t6}, 3, v{t5}")
    a(f"v_lshrrev_b32 v{t6}, 1, v{rr_}")
    a(f"v_lshlrev_b32 v{t6}, 6, v{t6}")
    a(f"v_add_u32 v{VBE}, v{t5}, v{t6}")
    a(f"v_sub_u32 v{VBO}, v{t5}, v{t6}")
    a(f"s_mul_i32 s7, s3, {UNIT}")
    a(f"s_add_u32 s7, s7, {RINGB}")
    a(f"v_lshl_add_u32 v{QRD}, v0, 4, s7")
    if "warm" in FLAGS:
        a("s_mul_i32 s28, s5, 384")
        a("s_mul_i32 s7, s3, 640")
        for i in range(10):
            a(f"v_add_u32 v25, s7, v0")
            if i:
                a(f"v_add_u32 v25, {64 * i}, v25")
            a("v_mul_u32_u24 v26, 21846, v25")
            a("v_lshrrev_b32 v26, 16, v26")
            a("v_mul_u32_u24 v27, 3, v26")
            a("v_sub_u32 v27, v25, v27")
            a("v_mul_u32_u24 v26, 12288, v26")
            a("v_lshl_add_u32 v26, v27, 7, v26")
            a(f"buffer_load_dword v31, v26, s[16:19], s28 offen")
    a(f"s_mov_b32 s32, {f32hex(CSCALE)}")
    a(f"s_mov_b32 s46, {f32hex(8.0 / CSCALE)}")
    a("s_mov_b32 s33, 0")
    a("s_mov_b32 s49, 0")
    a("s_lshl_b32 s7, s3, 8")
    for jj in range(4):
        a(f"v_add_u32 v25, s7, v0")
        if jj:
            a(f"v_add_u32 v25, {64 * jj}, v25")
        div24(a, 26, 27, 25, 28)
        a("v_bfe_u32 v28, v26, 1, 1")
        a("v_lshlrev_b32 v28, 2, v28")
        a("v_xor_b32 v27, v27, v28")
        a("v_mul_u32_u24 v26, 12288, v26")
        a(f"v_lshl_add_u32 v{O + jj}, v27, 4, v26")
    a("s_mul_i32 s29, s5, 384")
    a("s_lshl_b32 s28, s3, 12")
    a(f"s_add_u32 s28, s28, {RINGB}")

    def w_issue(t):
        a(f"s_add_u32 s62, s57, {t}")
        a("s_sub_u32 s63, s62, 20")
        a("s_cmp_ge_u32 s62, 20")
        a("s_cselect_b32 s62, s63, s62")
        a(f"s_mul_i32 s31, s62, {32 * 12288}")
        a("s_add_u32 s31, s31, s29")
        i = t % R1
        so = i * UNIT if i < 4 else (i - 8) * UNIT
        for jj in range(4):
            off = so + jj * 1024
            if off >= 0:
                a(f"s_add_u32 m0, s28, {off}")
            else:
                a(f"s_sub_u32 m0, s28, {-off}")
            a("s_nop 0")
            if "nowq" not in FLAGS:
                a(f"buffer_load_dwordx4 v{O + jj}, s[16:19], s31 offen {WQF}lds")

    for t in range(R1):
        w_issue(t)
    a(f"s_waitcnt vmcnt({4 * (R1 - 1)})")
    a("s_barrier")
    for t in range(20):
        if t + 1 < 20:
            a(f"s_waitcnt vmcnt({4 * min(R1 - 2, 18 - t)})")
        a("s_barrier")
        if "st1" in FLAGS and t == int(os.environ.get("ST1", "0")):
            a("s_memrealtime s[52:53]")
        if t + R1 < 20:
            w_issue(t + R1)
    a("s_barrier")
    if "stamp" in FLAGS:
        if "st1" not in FLAGS:
            a("s_memrealtime s[52:53]")
        a("s_memtime s[58:59]")

    def adv():
        a(f"s_add_u32 s33, s33, {UNIT}")
        a(f"s_cmp_eq_u32 s33, {RINGB}")
        a(f"s_cselect_b32 s33, 0, s33")

    def k_addr():
        for i in range(4):
            a(f"v_add_u32 v{KA + i}, s33, v{KB + i}")
        adv()

    def v_addr():
        a(f"v_add_u32 v{VA}, s33, v{VBE}")
        a(f"v_add_u32 v{VA + 1}, s33, v{VBO}")
        adv()

    def k_read(ks, ring=6):
        L.issue(("k", ks), f"ds_read_b128 {vr(KF + 4 * (ks % ring), 4)}, v{KA + (ks & 3)} offset:{128 * (ks >> 2)}")

    def v_read(n):
        T, j = divmod(n, 2)
        for rd in range(2):
            off = (16 * j + 8 * rd) * 384 + 64 * T
            L.issue(("v", n), f"ds_read_b64_tr_b16 {vr(VF + 4 * (n % 6) + 2 * rd, 2)}, v{VA + (T & 1)} offset:{off}")

    def sm1_ops(S, tag):
        ops = []
        ops.append(f"v_max3_f32 v{T0}, v{S}, v{S + 1}, v{VM}")
        for k in range(2, 16, 2):
            ops.append(f"v_max3_f32 v{T0}, v{S + k}, v{S + k + 1}, v{T0}")
        ops.append(f"v_mov_b32 v{T1}, v{T0}")
        ops.append("s_nop 1")
        ops.append(f"v_permlane32_swap_b32 v{T0}, v{T1}")
        ops.append(f"v_max_f32 v{T0}, v{T0}, v{T1}")
        ops.append(f"v_sub_f32 v{T1}, v{T0}, v{VM}")
        ops.append(f"v_cmp_lt_f32 vcc, s46, v{T1}")
        ops.append(f"s_cbranch_vccnz A_rare1_{tag}")
        ops.append(f"A_back1_{tag}:")
        for k in range(16):
            ops.append(f"v_fma_f32 v{S + k}, v{S + k}, s32, -v{VMC}")
        return ops

    def sm2_ops(S):
        ops = []
        for k in range(16):
            ops.append(f"v_exp_f32 v{S + k}, v{S + k}")
        for e in range(8):
            ops.append(f"v_cvt_pk_bf16_f32 v{P + e}, v{S + 2 * e}, v{S + 2 * e + 1}")
        for k in range(0, 16, 2):
            ops.append(f"v_add_f32 v{S + k}, v{S + k}, v{S + k + 1}")
        for k in range(0, 16, 4):
            ops.append(f"v_add_f32 v{S + k}, v{S + k}, v{S + k + 2}")
        ops.append(f"v_add_f32 v{S}, v{S}, v{S + 4}")
        ops.append(f"v_add_f32 v{S + 8}, v{S + 8}, v{S + 12}")
        ops.append(f"v_add_f32 v{S}, v{S}, v{S + 8}")
        ops.append(f"v_add_f32 v{VL}, v{VL}, v{S}")
        return ops

    rare = []

    def emit(op):
        if op.endswith(":"):
            a.label(op[:-1])
        else:
            a(op)

    def take(lst, n):
        for _ in range(min(n, len(lst))):
            emit(lst.pop(0))

    def rare1(tag):
        rare.append(f"A_rare1_{tag}:")
        rare.append(f"    v_sub_f32 v{VAL}, v{VM}, v{T0}")
        rare.append(f"    v_mul_f32 v{VAL}, s32, v{VAL}")
        rare.append(f"    v_exp_f32 v{VAL}, v{VAL}")
        rare.append(f"    v_mov_b32 v{VM}, v{T0}")
        rare.append(f"    v_mul_f32 v{VMC}, s32, v{T0}")
        rare.append(f"    v_mul_f32 v{VL}, v{VL}, v{VAL}")
        rare.append(f"    s_mov_b32 s47, 1")
        rare.append(f"    s_branch A_back1_{tag}")

    def rare2(tag):
        a("s_cmp_lg_u32 s47, 0")
        a(f"s_cbranch_scc1 A_rare2_{tag}")
        a.label(f"A_back2_{tag}")
        rare.append(f"A_rare2_{tag}:")
        rare.append("    s_nop 15")
        for i in range(96):
            rare.append(f"    v_mul_f32 v{O + i}, v{O + i}, v{VAL}")
        rare.append("    s_mov_b32 s47, 0")
        rare.append(f"    s_branch A_back2_{tag}")

    EXPB = 3

    def iteration(cur, nxt, tag, qk=True, knext=True):
        rare2(tag)
        f = sm2_ops(cur)[EXPB:]
        per = [3, 3, 3, 3, 4, 4, 5, 5, 2, 2, 2, 9]
        for ks in range(12):
            if qk:
                L.need(("k", ks))
                c = "0" if ks == 0 else vr(nxt, 16)
                a(f"v_mfma_f32_32x32x16_bf16 {vr(nxt, 16)}, {vr(KF + 4 * (ks % 6), 4)}, {vr(QF + 4 * ks, 4)}, {c}")
                if ks + 6 < 12:
                    k_read(ks + 6)
            take(f, per[ks])
            if ks == 7:
                v_addr()
            if ks == 8:
                L.drain()
                a("s_barrier")
            if ks in (8, 9, 10):
                v_read(2 * (ks - 8))
                v_read(2 * (ks - 8) + 1)
        take(f, 99)
        g = []
        if qk:
            g = sm1_ops(nxt, tag) + sm2_ops(nxt)[:EXPB]
            rare1(tag)
        per = [0, 0, 0, 3, 3, 3, 4, 6, 4, 4, 4, 9]
        for n in range(12):
            T, j = divmod(n, 2)
            L.need(("v", n))
            a(f"v_mfma_f32_32x32x16_bf16 {vr(O + 16 * T, 16)}, {vr(VF + 4 * (n % 6), 4)}, {vr(P + 4 * j, 4)}, {vr(O + 16 * T, 16)}")
            if n + 6 < 12:
                v_read(n + 6)
            if n == 2 and qk:
                a("s_nop 7")
            take(g, per[n])
            if knext:
                if n == 7:
                    k_addr()
                if n == 8:
                    L.drain()
                    a("s_barrier")
                if n in (8, 9, 10):
                    k_read(2 * (n - 8))
                    k_read(2 * (n - 8) + 1)
        take(g, 99)

    a.label("A_item")
    for ks in range(12):
        L.issue(("q",), f"ds_read_b128 {vr(QF + 4 * ks, 4)}, v{QRD} offset:{ks * 1024}")
    for i in range(96):
        a(f"v_mov_b32 v{O + i}, 0")
    a(f"v_mov_b32 v{VM}, 0xff800000")
    a(f"v_mov_b32 v{VL}, 0")
    a("s_mov_b32 s47, 0")
    k_addr()
    L.drain()
    a("s_barrier")
    for ks in range(12):
        k_read(ks, ring=12)
    for ks in range(12):
        L.need(("k", ks))
        c = "0" if ks == 0 else vr(SA, 16)
        a(f"v_mfma_f32_32x32x16_bf16 {vr(SA, 16)}, {vr(KF + 4 * ks, 4)}, {vr(QF + 4 * ks, 4)}, {c}")
    k_addr()
    a("s_barrier")
    for ks in range(6):
        k_read(ks)
    a("s_nop 4")
    g = sm1_ops(SA, "p") + sm2_ops(SA)[:EXPB]
    rare1("p")
    take(g, 99)
    a("s_mov_b32 s34, 0")
    q0 = list(L.q)
    a.label("A_loop")
    iteration(SA, SB, "e")
    iteration(SB, SA, "o")
    assert L.q == q0, (L.q, q0)
    a("s_add_u32 s34, s34, 1")
    a("s_cmp_lt_u32 s34, 15")
    a("s_cbranch_scc1 A_loop")
    iteration(SA, SB, "e2", knext=False)
    iteration(SB, SA, "o2", qk=False, knext=False)
    a(f"v_mov_b32 v{T1}, v{VL}")
    a("s_nop 1")
    a(f"v_permlane32_swap_b32 v{VL}, v{T1}")
    a(f"v_add_f32 v{VL}, v{VL}, v{T1}")
    a(f"v_rcp_f32 v{T1}, v{VL}")
    a("s_mul_i32 s7, s4, 3")
    a("s_add_u32 s7, s7, s3")
    a("s_mul_i32 s7, s7, 384")
    a("s_mul_i32 s35, s5, 12")
    a("s_add_u32 s7, s7, s35")
    a("s_lshl_b32 s7, s7, 10")
    a(f"v_lshlrev_b32 v{T2}, 4, v0")
    a("s_nop 7")
    for T in range(6):
        for g in range(4):
            for e in range(2):
                r = O + 16 * T + 4 * g + 2 * e
                a(f"v_mul_f32 v{r}, v{r}, v{T1}")
                a(f"v_mul_f32 v{r + 1}, v{r + 1}, v{T1}")
        for g in range(4):
            for e in range(2):
                r = O + 16 * T + 4 * g + 2 * e
                a(f"v_cvt_pk_bf16_f32 v{KF + 8 * T + 2 * g + e}, v{r}, v{r + 1}")
        a("s_nop 1")
        for g in (0, 2):
            d = KF + 8 * T + 2 * g
            a(f"v_permlane32_swap_b32 v{d}, v{d + 2}")
            a(f"v_permlane32_swap_b32 v{d + 1}, v{d + 3}")
        for g in (0, 2):
            d = KF + 8 * T + 2 * g
            a(f"buffer_store_dwordx4 {vr(d, 4)}, v{T2}, s[24:27], s7 offen offset:{512 * g}")
        a("s_add_u32 s7, s7, 2048")
    a("s_add_u32 s4, s4, 8")
    a("s_add_u32 s49, s49, 1")
    a("s_cmp_lt_u32 s49, 2")
    a("s_cbranch_scc0 A_fin")
    a("s_waitcnt vmcnt(0)")
    a("s_branch A_item")
    a.label("A_fin")
    if "stamp" in FLAGS:
        a("s_memrealtime s[54:55]")
        a("s_memtime s[60:61]")
        a("s_waitcnt lgkmcnt(0)")
        a("s_sub_u32 s56, s60, s58")
        if "xcc" in FLAGS:
            a("s_getreg_b32 s56, hwreg(HW_REG_XCC_ID)")
        a("s_mov_b32 s26, 0x7fffffff")
        a("v_mov_b32 v4, s50")
        a("v_mov_b32 v5, s52")
        a("v_mov_b32 v6, s54")
        a("v_mov_b32 v7, s56")
        a("s_lshl_b32 s7, s2, 2")
        a("s_add_u32 s7, s7, s3")
        a("s_lshl_b32 s7, s7, 4")
        a("s_add_u32 s7, s7, 0x4000000")
        a("v_mov_b32 v8, 0")
        a("buffer_store_dwordx4 v[4:7], v8, s[24:27], s7 offen")
    a("s_endpgm")
    a.l.extend(rare)

    a.label("A_qwave")
    ACC, XR, AF, QP = 32, 176, 128, 176
    WOFF, XOFF, WBE, WBO, QW, WBE2, WBO2 = 4, 8, 11, 12, 13, 14, 15
    L = LdsQ(a)
    a("s_sub_u32 s3, s3, 4")
    a("v_and_b32 v16, 31, v0")
    a("v_lshrrev_b32 v17, 5, v0")
    a("v_and_b32 v18, 15, v0")
    a("v_bfe_u32 v19, v0, 4, 1")
    a("v_lshrrev_b32 v20, 2, v18")
    a("v_and_b32 v21, 3, v18")
    a("s_lshl_b32 s7, s3, 8")
    for jj in range(4):
        a(f"v_add_u32 v25, s7, v0")
        if jj:
            a(f"v_add_u32 v25, {64 * jj}, v25")
        div24(a, 26, 27, 25, 28)
        a("v_bfe_u32 v28, v26, 1, 1")
        a("v_lshlrev_b32 v28, 2, v28")
        a("v_xor_b32 v27, v27, v28")
        a(f"v_mul_u32_u24 v26, {384 if 'wqlin' in FLAGS else 12288}, v26")
        a(f"v_lshl_add_u32 v{WOFF + jj}, v27, 4, v26")
    a("v_lshl_add_u32 v25, v17, 3, v20")
    a("v_mul_u32_u24 v25, 384, v25")
    a("v_and_b32 v26, 1, v21")
    a("v_lshl_add_u32 v26, v19, 1, v26")
    a("v_lshl_add_u32 v25, v26, 4, v25")
    a("v_lshrrev_b32 v26, 1, v21")
    a("v_lshl_add_u32 v25, v26, 3, v25")
    a(f"v_add_u32 v25, {RINGB}, v25")
    a("v_lshrrev_b32 v26, 1, v20")
    a("v_lshlrev_b32 v26, 6, v26")
    a(f"v_add_u32 v{WBE}, v25, v26")
    a(f"v_sub_u32 v{WBO}, v25, v26")
    a(f"v_subrev_u32 v{WBE2}, {4 * UNIT}, v{WBE}")
    a(f"v_subrev_u32 v{WBO2}, {4 * UNIT}, v{WBO}")
    a("s_lshl_b32 s7, s3, 5")
    a("v_add_u32 v25, s7, v16")
    a("v_mul_u32_u24 v25, 1280, v25")
    a(f"v_lshl_add_u32 v{XOFF}, v17, 4, v25")
    if "xlin" in FLAGS:
        a(f"v_lshlrev_b32 v{XOFF}, 4, v0")
        a("s_mul_i32 s7, s3, 40960")
        a(f"v_add_u32 v{XOFF}, s7, v{XOFF}")
    a(f"s_mul_i32 s7, s3, {UNIT}")
    a(f"s_add_u32 s7, s7, {RINGB}")
    a(f"v_lshl_add_u32 v{QW}, v0, 4, s7")
    a(f"s_mul_i32 s29, s5, {245760 if 'wqlin' in FLAGS else 384}")
    a("s_mul_i32 s30, s4, 122880")
    a("s_lshl_b32 s28, s3, 12")
    a(f"s_add_u32 s28, s28, {RINGB}")

    def slot_off(t, R):
        i = t % R
        return i * UNIT if i < 4 else (i - 8) * UNIT

    def q_issue(t, R, dma=True):
        a(f"s_add_u32 s62, s57, {t}")
        a("s_sub_u32 s63, s62, 20")
        a("s_cmp_ge_u32 s62, 20")
        a("s_cselect_b32 s62, s63, s62")
        a(f"s_mul_i32 s31, s62, {32 * 12288}")
        a("s_add_u32 s31, s31, s29")
        a("s_lshl_b32 s35, s62, 6")
        a("s_add_u32 s35, s35, s30")
        for jj in range(4 if dma else 0):
            off = slot_off(t, R) + jj * 1024
            if off >= 0:
                a(f"s_add_u32 m0, s28, {off}")
            else:
                a(f"s_sub_u32 m0, s28, {-off}")
            a("s_nop 0")
            a(f"buffer_load_dwordx4 v{WOFF + jj}, s[16:19], s31 offen {WQF}lds")
        for k2 in range(0 if "nox" in FLAGS else 2):
            a(f"buffer_load_dwordx4 {vr(XR + (t % (R + 1)) * 8 + 4 * k2, 4)}, v{XOFF}, s[20:23], s35 offen offset:{k2 * 32}")

    def wq_read(t, n, R):
        k2, T = divmod(n, 6)
        so = slot_off(t, R)
        if so >= 0:
            base = WBE if T % 2 == 0 else WBO
        else:
            base = WBE2 if T % 2 == 0 else WBO2
            so += 4 * UNIT
        for rd in range(2):
            off = so + (16 * k2 + 4 * rd) * 384 + 64 * T
            L.issue(("w", t, n), f"ds_read_b64_tr_b16 {vr(AF + n * 4 + 2 * rd, 2)}, v{base} offset:{off}")

    def q_pass(R, dma):
        c_ = 6 if dma else 2
        for t in range(R):
            q_issue(t, R, dma)
        a(f"s_waitcnt vmcnt({c_ * (R - 1)})")
        a("s_barrier")
        for n in range(12):
            wq_read(0, n, R)
        for t in range(20):
            L.drain()
            if t + 1 < 20:
                a(f"s_waitcnt vmcnt({c_ * min(R - 2, 18 - t)})")
            a("s_barrier")
            if t + R < 20:
                q_issue(t + R, R, dma)
            for n in range(12):
                k2, T = divmod(n, 6)
                c = "0" if (t == 0 and k2 == 0) else vr(ACC + 16 * T, 16)
                a(f"v_mfma_f32_32x32x16_bf16 {vr(ACC + 16 * T, 16)}, {vr(AF + n * 4, 4)}, {vr(XR + (t % (R + 1)) * 8 + 4 * k2, 4)}, {c}")
                if t + 1 < 20:
                    wq_read(t + 1, n, R)
        a("s_nop 15")
        for T in range(6):
            for e in range(8):
                a(f"v_cvt_pk_bf16_f32 v{QP + 8 * T + e}, v{ACC + 16 * T + 2 * e}, v{ACC + 16 * T + 2 * e + 1}")
        for ks in range(12):
            a(f"ds_write_b128 v{QW}, {vr(QP + 4 * ks, 4)} offset:{ks * 1024}")
        a("s_waitcnt lgkmcnt(0)")

    q_pass(R1, False)
    a("s_barrier")
    a("s_barrier")
    a("s_add_u32 s30, s30, 983040")
    q_pass(4, True)
    if "wopf" in FLAGS:
        a("s_load_dwordx2 s[40:41], s[0:1], 32")
        a("s_waitcnt lgkmcnt(0)")
        srd(a, (40, 40), WO_BYTES)
        a("s_mul_i32 s7, s2, 30720")
        a("s_mul_i32 s35, s3, 10240")
        a("s_add_u32 s7, s7, s35")
        a("v_lshlrev_b32 v16, 7, v0")
        a("v_add_u32 v17, 8192, v16")
        a("v_cmp_gt_u32 vcc, 16, v0")
        a("buffer_load_dword v18, v16, s[40:43], s7 offen")
        a("s_and_saveexec_b64 s[44:45], vcc")
        a("buffer_load_dword v19, v17, s[40:43], s7 offen")
        a("s_mov_b64 exec, s[44:45]")
    a("s_mov_b32 s34, 0")
    a.label("A_qidle")
    a("s_barrier")
    a("s_add_u32 s34, s34, 1")
    a(f"s_cmp_lt_u32 s34, {128 - 22}")
    a("s_cbranch_scc1 A_qidle")
    a("s_endpgm")

    seq = []
    for r in range(2):
        seq.append(('K', r, 0))
        for i in range(31):
            seq.append(('K', r, i + 1))
            seq.append(('V', r, i))
        seq.append(('V', r, 31))
    N = len(seq)
    for who in "KV":
        a.label(f"A_load{who}")
        a("s_setprio 3")
        OF = 32
        for j in range(12):
            a(f"v_add_u32 v25, {64 * j}, v0")
            div24(a, 26, 27, 25, 28)
            if who == "K":
                a("v_bfe_u32 v28, v26, 1, 3")
            else:
                a("v_bfe_u32 v28, v26, 1, 1")
                a("v_lshlrev_b32 v28, 2, v28")
            a("v_xor_b32 v29, v27, v28")
            a("v_mul_u32_u24 v26, 384, v26")
            a(f"v_lshl_add_u32 v{OF + j}, v29, 4, v26")
        rs = "s[8:11]" if who == "K" else "s[12:15]"

        def issue(u):
            if u[2] == 0 and u[1] == 1:
                a(f"s_add_u32 s29, s6, {8 * 32 * 393216}")
            if "noload" not in FLAGS:
                for j in range(12):
                    a(f"s_add_u32 m0, s31, {j * 1024}")
                    a("s_nop 0")
                    a(f"buffer_load_dwordx4 v{OF + j}, {rs}, s29 offen {NT}lds")
            a("s_add_u32 s29, s29, 12288")

        def nextslot():
            a(f"s_add_u32 s31, s31, {UNIT}")
            a(f"s_cmp_eq_u32 s31, {RINGB}")
            a("s_cselect_b32 s31, 0, s31")

        a("s_mov_b32 s29, s6")
        a("s_mov_b32 s31, 0")
        for n in range(5):
            if seq[n][0] == who:
                issue(seq[n])
            nextslot()
        for i in range(21):
            a("s_barrier")
        for n in range(5, RING - 1):
            if seq[n][0] == who:
                issue(seq[n])
            nextslot()
        a("s_barrier")
        ev = []
        for n in range(N):
            upto = min(N - 1, n + RING - 2)
            w = None
            if seq[n][0] == who:
                w = sum(1 for m in range(n + 1, upto + 1) if seq[m][0] == who) * 12
            m = n + RING - 1
            iss = seq[m] if (m < N and seq[m][0] == who) else None
            key = (w, None if iss is None else (iss[2] == 0 and iss[1] == 1))
            ev.append((key, iss))

        def step(e):
            (w, _), iss = e
            if w is not None:
                a(f"s_waitcnt vmcnt({w})")
            a("s_barrier")
            if iss is not None:
                issue(iss)
            nextslot()

        n = 0
        while n < N:
            k = n
            while k + 2 < N and ev[k + 2][0] == ev[k][0]:
                k += 1
            reps = (k + 2 - n) // 2
            if reps >= 4:
                lab = a.newlabel(f"A_l{who}")
                a("s_mov_b32 s34, 0")
                a.label(lab)
                step(ev[n])
                step(ev[n + 1])
                a("s_add_u32 s34, s34, 1")
                a(f"s_cmp_lt_u32 s34, {reps}")
                a(f"s_cbranch_scc1 {lab}")
                n += 2 * reps
            else:
                step(ev[n])
                n += 1
        a("s_endpgm")
    a.label("A_done")
    a("s_endpgm")


NCH = 8
LDS2 = 4 * NCH * 4096


def gen_oproj(a):
    K = "oproj_kernel"
    a.l.append(f".globl {K}\n.p2align 8\n.type {K},@function\n{K}:")
    a("s_cmp_ge_u32 s2, 240")
    a("s_cbranch_scc1 B_done")
    a("s_load_dwordx4 s[36:39], s[0:1], 32")
    a("s_load_dwordx2 s[44:45], s[0:1], 56")
    a("v_lshrrev_b32 v1, 6, v0")
    a("v_and_b32 v0, 63, v0")
    a("s_and_b32 s4, s2, 7")
    a("s_lshr_b32 s5, s2, 3")
    a("v_readfirstlane_b32 s3, v1")
    a("s_mul_i32 s6, s5, 205")
    a("s_lshr_b32 s6, s6, 11")
    a("s_mul_i32 s7, s6, 10")
    a("s_sub_u32 s7, s5, s7")
    a("s_mul_i32 s4, s4, 3")
    a("s_add_u32 s6, s6, s4")
    a("s_waitcnt lgkmcnt(0)")
    srd(a, (8, 36), WO_BYTES)
    srd(a, (12, 44), O_BYTES)
    srd(a, (16, 38), OUT_BYTES)
    ACC, OF, AF = 64, 128, 32
    WOFF, OOFF, RBE, RBO = 8, 12, 14, 15
    a("v_and_b32 v1, 31, v0")
    a("v_lshrrev_b32 v2, 5, v0")
    a("v_and_b32 v3, 15, v0")
    a("v_bfe_u32 v4, v0, 4, 1")
    a("v_lshrrev_b32 v5, 2, v3")
    a("v_and_b32 v6, 3, v3")
    for jj in range(4):
        a(f"v_add_u32 v25, {64 * jj}, v0")
        a("v_lshrrev_b32 v26, 3, v25")
        a("v_and_b32 v27, 7, v25")
        a("v_bfe_u32 v28, v26, 1, 1")
        a("v_lshlrev_b32 v28, 2, v28")
        a("v_xor_b32 v27, v27, v28")
        a("v_mul_u32_u24 v26, 1280, v26")
        a(f"v_lshl_add_u32 v{WOFF + jj}, v27, 4, v26")
    a("v_lshl_add_u32 v25, v2, 3, v5")
    a("v_lshlrev_b32 v25, 7, v25")
    a("v_lshrrev_b32 v26, 1, v6")
    a("v_lshl_add_u32 v26, v4, 1, v26")
    a("v_lshl_add_u32 v25, v26, 4, v25")
    a("v_and_b32 v26, 1, v6")
    a("v_lshl_add_u32 v25, v26, 3, v25")
    a(f"s_mul_i32 s20, s3, {NCH * 4096}")
    a("v_add_u32 v25, s20, v25")
    a("v_lshrrev_b32 v26, 1, v5")
    a("v_lshlrev_b32 v26, 6, v26")
    a(f"v_add_u32 v{RBE}, v25, v26")
    a(f"v_sub_u32 v{RBO}, v25, v26")
    a(f"s_mul_i32 s21, s6, {2 * 384 * 1024}")
    a(f"v_lshl_add_u32 v{OOFF}, v0, 4, s21")
    a(f"v_add_u32 v{OOFF + 1}, {384 * 1024}, v{OOFF}")
    a("s_mul_i32 s23, s3, 1966080")
    a("s_lshl_b32 s24, s7, 7")
    a("s_add_u32 s26, s23, s24")
    a("s_mul_i32 s27, s3, 98304")
    a("s_mul_i32 s28, s5, 13")
    a("s_lshr_b32 s28, s28, 3")
    a("s_mov_b32 s28, 0")

    def issue(slot):
        a("s_mul_i32 s23, s28, 40960")
        a("s_add_u32 s23, s23, s26")
        a("s_lshl_b32 s24, s28, 11")
        a("s_add_u32 s24, s24, s27")
        for jj in range(4):
            a(f"s_add_u32 m0, s20, {slot * 4096 + jj * 1024}")
            a("s_nop 0")
            a(f"buffer_load_dwordx4 v{WOFF + jj}, s[8:11], s23 offen lds")
        for k2 in range(2):
            for tt in range(2):
                a(f"buffer_load_dwordx4 {vr(OF + slot * 16 + (k2 * 2 + tt) * 4, 4)}, v{OOFF + tt}, s[12:15], s24 offen offset:{k2 * 1024}")
        a("s_add_u32 s28, s28, 1")
        a("s_cmp_eq_u32 s28, 48")
        a("s_cselect_b32 s28, 0, s28")

    for i in range(64):
        a(f"v_mov_b32 v{ACC + i}, 0")
    for s in range(NCH - 1):
        issue(s)
    a("s_mov_b32 s25, 0")
    a.label("B_loop")
    for s in range(NCH):
        a(f"s_waitcnt vmcnt({8 * (NCH - 2)})")
        issue((s + NCH - 1) % NCH)
        for k2 in range(2):
            for T in range(2):
                base = RBE if T == 0 else RBO
                for rd in range(2):
                    off = s * 4096 + (16 * k2 + 4 * rd) * 128 + 64 * T
                    a(f"ds_read_b64_tr_b16 {vr(AF + (k2 * 2 + T) * 4 + 2 * rd, 2)}, v{base} offset:{off}")
        for k2 in range(2):
            for T in range(2):
                a(f"s_waitcnt lgkmcnt({8 - 2 * (k2 * 2 + T + 1)})")
                for tt in range(2):
                    acc = ACC + (T * 2 + tt) * 16
                    a(f"v_mfma_f32_32x32x16_bf16 {vr(acc, 16)}, {vr(AF + (k2 * 2 + T) * 4, 4)}, {vr(OF + s * 16 + (k2 * 2 + tt) * 4, 4)}, {vr(acc, 16)}")
    a("s_add_u32 s25, s25, 1")
    a(f"s_cmp_lt_u32 s25, {48 // NCH}")
    a("s_cbranch_scc1 B_loop")
    a("s_waitcnt vmcnt(0)")
    a("s_barrier")
    a("v_lshlrev_b32 v25, 4, v0")
    a("s_lshl_b32 s21, s3, 14")
    a("v_add_u32 v26, s21, v25")
    a("s_nop 7")
    for i in range(16):
        a(f"ds_write_b128 v26, {vr(ACC + 4 * i, 4)} offset:{i * 1024}")
    a("s_waitcnt lgkmcnt(0)")
    a("s_barrier")
    a("s_lshl_b32 s21, s3, 12")
    a("v_add_u32 v26, s21, v25")
    for w in range(4):
        for g in range(4):
            a(f"ds_read_b128 {vr(ACC + 16 * w + 4 * g, 4)}, v26 offset:{w * 16384 + g * 1024}")
    a("s_waitcnt lgkmcnt(0)")
    for i in range(16):
        a(f"v_add_f32 v{ACC + i}, v{ACC + i}, v{ACC + 16 + i}")
        a(f"v_add_f32 v{ACC + 32 + i}, v{ACC + 32 + i}, v{ACC + 48 + i}")
    for i in range(16):
        a(f"v_add_f32 v{ACC + i}, v{ACC + i}, v{ACC + 32 + i}")
    for g in range(4):
        for e in range(2):
            a(f"v_cvt_pk_bf16_f32 v{AF + 2 * g + e}, v{ACC + 4 * g + 2 * e}, v{ACC + 4 * g + 2 * e + 1}")
    a("s_lshr_b32 s21, s3, 1")
    a("s_and_b32 s22, s3, 1")
    a("s_lshl_b32 s23, s6, 6")
    a("s_lshl_b32 s22, s22, 5")
    a("s_add_u32 s23, s23, s22")
    a("v_add_u32 v25, s23, v1")
    a("v_mul_u32_u24 v25, 1280, v25")
    a("v_lshl_add_u32 v25, v2, 4, v25")
    a("s_lshl_b32 s23, s7, 7")
    a("s_lshl_b32 s21, s21, 6")
    a("s_add_u32 s23, s23, s21")
    for g in (0, 2):
        d = AF + 2 * g
        a(f"v_permlane32_swap_b32 v{d}, v{d + 2}")
        a(f"v_permlane32_swap_b32 v{d + 1}, v{d + 3}")
    for g in (0, 2):
        d = AF + 2 * g
        a(f"buffer_store_dwordx4 {vr(d, 4)}, v25, s[16:19], s23 offen offset:{16 * g}")
    a.label("B_done")
    a("s_endpgm")


def descriptor(name, vgpr):
    return f""".p2align 6
.amdhsa_kernel {name}
  .amdhsa_next_free_vgpr {vgpr}
  .amdhsa_next_free_sgpr 64
  .amdhsa_accum_offset {vgpr}
  .amdhsa_group_segment_fixed_size 0
  .amdhsa_kernarg_size 64
  .amdhsa_user_sgpr_count 2
  .amdhsa_user_sgpr_kernarg_segment_ptr 1
  .amdhsa_system_sgpr_workgroup_id_x 1
.end_amdhsa_kernel
"""


def main():
    ref = open(f"cdna_kernels/{NAME}.s.ref").read().splitlines()
    head = [l for l in ref if l.startswith(";") and "@launch" not in l and "Override" not in l and "grid=ceil" not in l]
    a = Asm()
    out = "\n".join(head) + "\n"
    out += f"; @launch kernel=attn_kernel grid=(256,1,1) block=(512,1,1) lds={LDS1}\n"
    out += f"; @launch kernel=oproj_kernel grid=(240,1,1) block=(256,1,1) lds={LDS2}\n"
    out += '.amdgcn_target "amdgcn-amd-amdhsa--gfx950"\n.text\n'
    gen_attn(a)
    gen_oproj(a)
    out += a.text()
    out += '.section .rodata,"a"\n'
    out += descriptor("attn_kernel", 256)
    out += descriptor("oproj_kernel", 256)
    dst = sys.argv[1] if len(sys.argv) > 1 else f"cdna_kernels/{NAME}.s"
    open(dst, "w").write(out)


if __name__ == "__main__":
    main()
```

```python
import math, sys, os
FLAGS = os.environ.get("GENFLAGS", "").split(",")

NAME = "standalone__mha_block_cached__near_ridge"
B, SQ, D, H, SK, DH = 16, 96, 640, 32, 1024, 192
KV_BYTES = B * H * SK * DH * 2
X_BYTES = B * SQ * D * 2
WQ_BYTES = D * H * DH * 2
WO_BYTES = H * DH * D * 2
OUT_BYTES = B * SQ * D * 2
O_BYTES = B * SQ * H * DH * 2
UNIT = 12288
NSLOT = 6
LDS1 = UNIT * NSLOT
WQF = os.environ.get("WQF", "")
if WQF: WQF += " "
OST = os.environ.get("OST", "")
if OST: OST = " " + OST
NT = "nt " if "nt" in FLAGS else ""
CSCALE = (DH ** -0.5) * math.log2(math.e)


class Asm:
    def __init__(self):
        self.l = []
        self.n = 0

    def __call__(self, s):
        if getattr(self, "nobar", False) and s == "s_barrier":
            return
        if getattr(self, "novalu", False) and (s.startswith("v_exp") or s.startswith("v_fma") or s.startswith("v_add_f32") or s.startswith("v_max3") or s.startswith("v_cvt")):
            return
        if getattr(self, "nolds", False) and s.startswith("ds_read"):
            return
        if getattr(self, "nomfma", False) and s.startswith("v_mfma"):
            return
        self.l.append("    " + s)

    def label(self, s):
        self.l.append(s + ":")

    def c(self, s):
        self.l.append("    ; " + s)

    def newlabel(self, p="L"):
        self.n += 1
        return f"{p}_{self.n}"

    def text(self):
        return "\n".join(self.l) + "\n"


def f32hex(x):
    import struct
    return "0x%08x" % struct.unpack("<I", struct.pack("<f", x))[0]


def vr(a, n):
    return f"v[{a}:{a + n - 1}]"


def srd(a, base, nbytes):
    a(f"s_mov_b32 s{base[0]}, s{base[1]}")
    a(f"s_and_b32 s{base[0] + 1}, s{base[1] + 1}, 0xffff")
    a(f"s_mov_b32 s{base[0] + 2}, {nbytes}")
    a(f"s_mov_b32 s{base[0] + 3}, 0x00020000")


def div24(a, vdst_q, vdst_r, vsrc, vt):
    a(f"v_mul_u32_u24 v{vdst_q}, 2731, v{vsrc}")
    a(f"v_lshrrev_b32 v{vdst_q}, 16, v{vdst_q}")
    a(f"v_mul_u32_u24 v{vt}, 24, v{vdst_q}")
    a(f"v_sub_u32 v{vdst_r}, v{vsrc}, v{vt}")


class LdsQ:
    def __init__(self, a):
        self.a = a
        self.q = []

    def issue(self, tag, text):
        self.a(text)
        self.q.append(tag)

    def need(self, tag):
        idx = max((i for i, t in enumerate(self.q) if t == tag), default=-1)
        if idx < 0:
            return
        n = len(self.q) - 1 - idx
        self.a(f"s_waitcnt lgkmcnt({min(n, 15)})")
        self.q = self.q[idx + 1:] if n <= 15 else self.q[len(self.q) - 15:]

    def drain(self):
        self.a("s_waitcnt lgkmcnt(0)")
        self.q = []


RING = 10
RINGB = RING * UNIT
LDS1 = RINGB + 3 * UNIT
R1 = 8
KV0 = 5


def gen_attn(a):
    K = "attn_kernel"
    a.l.append(f".globl {K}\n.p2align 8\n.type {K},@function\n{K}:")
    a("s_cmp_ge_u32 s2, 256")
    a("s_cbranch_scc1 A_done")
    a("s_load_dwordx8 s[36:43], s[0:1], 0")
    a("s_load_dwordx2 s[44:45], s[0:1], 56")
    a("v_lshrrev_b32 v1, 6, v0")
    a("v_and_b32 v0, 63, v0")
    a("s_lshr_b32 s4, s2, 5")
    a("s_and_b32 s5, s2, 7")
    a("s_lshl_b32 s5, s5, 2")
    a("s_bfe_u32 s7, s2, 0x20003")
    a("s_add_u32 s5, s5, s7")
    a("v_readfirstlane_b32 s3, v1")
    a("s_lshl_b32 s6, s4, 5")
    a("s_add_u32 s6, s6, s5")
    a("s_mul_i32 s6, s6, 393216")
    a("s_waitcnt lgkmcnt(0)")
    srd(a, (8, 38), KV_BYTES)
    srd(a, (12, 40), KV_BYTES)
    srd(a, (16, 42), WQ_BYTES)
    srd(a, (20, 36), X_BYTES)
    srd(a, (24, 44), O_BYTES)
    if "stamp" in FLAGS:
        a("s_memrealtime s[50:51]")
    a("s_cmp_eq_u32 s3, 3")
    a("s_cbranch_scc1 A_loadK")
    a("s_cmp_eq_u32 s3, 7")
    a("s_cbranch_scc1 A_loadV")

    KB, VBE, VBO = 4, 8, 9
    KA, VA = 10, 14
    VM, VL, VMC, VAL = 16, 17, 18, 19
    T0, T1, T2, T3 = 20, 21, 22, 23
    QF, O, SA, SB, P, KF, VF = 24, 72, 168, 184, 200, 208, 232
    QRD = 1
    WOFF, WBE, WBO = 2, 11, 12
    AF = KF
    L = LdsQ(a)

    XW, XB, BFR = 15, 20, SA
    a("s_and_b32 s9, s3, 3")
    a("s_lshr_b32 s10, s3, 2")
    a("s_mul_i32 s11, s10, 3")
    a("s_add_u32 s11, s11, s9")
    q_, hf_, lp_, g1_, rr_, cc_, t5, t6, t7, t8 = range(KF, KF + 10)
    a("s_lshl_b32 s7, s11, 7")
    for jj in range(2):
        a(f"v_add_u32 v{t5}, s7, v0")
        if jj:
            a(f"v_add_u32 v{t5}, 64, v{t5}")
        div24(a, t6, t7, t5, t8)
        a(f"v_bfe_u32 v{t8}, v{t6}, 1, 1")
        a(f"v_lshlrev_b32 v{t8}, 2, v{t8}")
        a(f"v_xor_b32 v{t7}, v{t7}, v{t8}")
        a(f"v_mul_u32_u24 v{t6}, 12288, v{t6}")
        a(f"v_lshl_add_u32 v{WOFF + jj}, v{t7}, 4, v{t6}")
    for jj in range(4):
        a(f"v_add_u32 v{t5}, {64 * jj}, v0")
        a(f"v_lshrrev_b32 v{t6}, 3, v{t5}")
        a(f"v_and_b32 v{t7}, 7, v{t5}")
        a(f"v_bfe_u32 v{t8}, v{t6}, 1, 3")
        a(f"v_xor_b32 v{t7}, v{t7}, v{t8}")
        a(f"v_mul_u32_u24 v{t6}, 1280, v{t6}")
        a(f"v_lshl_add_u32 v{XW + jj}, v{t7}, 4, v{t6}")
    a("s_mul_i32 s29, s5, 384")
    a("s_lshl_b32 s7, s10, 3")
    a("s_add_u32 s7, s7, s4")
    a("s_mul_i32 s30, s7, 122880")
    a("s_mul_i32 s7, s9, 40960")
    a("s_add_u32 s30, s30, s7")
    a("s_lshl_b32 s28, s11, 11")
    a("s_lshl_b32 s48, s11, 12")

    WR = 4

    def wslot(t):
        i = t % WR
        return RINGB + i * UNIT if i < 3 else 9 * UNIT

    def xslot(u):
        return (5 + 2 * (u % 2)) * UNIT

    def w_issue(t):
        a(f"s_add_u32 s31, s29, {t * 32 * 12288}")
        for jj in range(2):
            a(f"s_add_u32 m0, s28, {wslot(t) + jj * 1024}")
            a("s_nop 0")
            a(f"buffer_load_dwordx4 v{WOFF + jj}, s[16:19], s31 offen lds")

    def x_issue(u):
        a(f"s_add_u32 s31, s30, {u * 128}")
        for jj in range(4):
            a(f"s_add_u32 m0, s48, {xslot(u) + jj * 1024}")
            a("s_nop 0")
            a(f"buffer_load_dwordx4 v{XW + jj}, s[20:23], s31 offen lds")

    vq = []

    def vissue(tag):
        if tag[0] == "w":
            w_issue(tag[1]); vq.append((tag, 2))
        else:
            x_issue(tag[1]); vq.append((tag, 4))

    def vneed(tags):
        idx = max((i for i, (t_, _) in enumerate(vq) if t_ in tags), default=-1)
        if idx < 0:
            return
        n = sum(c for _, c in vq[idx + 1:])
        a(f"s_waitcnt vmcnt({n})")
        del vq[:idx + 1]

    vissue(("w", 0)); vissue(("x", 0)); vissue(("w", 1)); vissue(("w", 2)); vissue(("x", 1)); vissue(("w", 3))
    a(f"v_and_b32 v{q_}, 31, v0")
    a(f"v_lshrrev_b32 v{hf_}, 5, v0")
    a(f"v_and_b32 v{lp_}, 15, v0")
    a(f"v_bfe_u32 v{g1_}, v0, 4, 1")
    a(f"v_lshrrev_b32 v{rr_}, 2, v{lp_}")
    a(f"v_and_b32 v{cc_}, 3, v{lp_}")
    a(f"v_bfe_u32 v{t5}, v{q_}, 1, 3")
    a(f"v_xor_b32 v{t5}, v{hf_}, v{t5}")
    a(f"v_mul_u32_u24 v{t6}, 384, v{q_}")
    a(f"v_lshl_add_u32 v{t8}, v{q_}, 7, s48")
    a(f"v_add_u32 v{t8}, {5 * UNIT}, v{t8}")
    for i in range(4):
        a(f"v_xor_b32 v{t7}, {2 * i}, v{t5}")
        a(f"v_lshl_add_u32 v{KB + i}, v{t7}, 4, v{t6}")
        a(f"v_lshl_add_u32 v{XB + i}, v{t7}, 4, v{t8}")
    a(f"v_lshl_add_u32 v{t5}, v{hf_}, 2, v{rr_}")
    a(f"v_mul_u32_u24 v{t5}, 384, v{t5}")
    a(f"v_lshrrev_b32 v{t6}, 1, v{cc_}")
    a(f"v_lshl_add_u32 v{t6}, v{g1_}, 1, v{t6}")
    a(f"v_lshl_add_u32 v{t5}, v{t6}, 4, v{t5}")
    a(f"v_and_b32 v{t6}, 1, v{cc_}")
    a(f"v_lshl_add_u32 v{t5}, v{t6}, 3, v{t5}")
    a(f"v_lshrrev_b32 v{t6}, 1, v{rr_}")
    a(f"v_lshlrev_b32 v{t6}, 6, v{t6}")
    a(f"v_add_u32 v{VBE}, v{t5}, v{t6}")
    a(f"v_sub_u32 v{VBO}, v{t5}, v{t6}")
    a(f"v_lshl_add_u32 v{t5}, v{hf_}, 3, v{rr_}")
    a(f"v_mul_u32_u24 v{t5}, 384, v{t5}")
    a(f"v_and_b32 v{t7}, 1, v{cc_}")
    a(f"v_lshl_add_u32 v{t7}, v{g1_}, 1, v{t7}")
    a(f"v_lshl_add_u32 v{t5}, v{t7}, 4, v{t5}")
    a(f"v_lshrrev_b32 v{t7}, 1, v{cc_}")
    a(f"v_lshl_add_u32 v{t5}, v{t7}, 3, v{t5}")
    a(f"v_add_u32 v{t5}, {9 * UNIT}, v{t5}")
    a(f"v_add_u32 v{WBE}, v{t5}, v{t6}")
    a(f"v_sub_u32 v{WBO}, v{t5}, v{t6}")
    a(f"s_mul_i32 s7, s9, {UNIT}")
    a(f"s_add_u32 s7, s7, {RINGB}")
    a(f"v_lshl_add_u32 v{QRD}, v0, 4, s7")

    def wq_read(t, n):
        k2, T = divmod(n, 6)
        so = wslot(t) - 9 * UNIT
        base = WBE if T % 2 == 0 else WBO
        for rd in range(2):
            off = so + (16 * k2 + 4 * rd) * 384 + 64 * T
            L.issue(("w", t, n), f"ds_read_b64_tr_b16 {vr(AF + n * 4 + 2 * rd, 2)}, v{base} offset:{off}")

    def x_read(t):
        for k2 in range(2):
            L.issue(("x", t), f"ds_read_b128 {vr(BFR + (t % 2) * 8 + 4 * k2, 4)}, v{XB + 2 * (t % 2) + k2} offset:{xslot(t // 2) - 5 * UNIT}")

    vneed([("w", 0), ("x", 0)])
    a("s_barrier")
    x_read(0)
    for n in range(12):
        wq_read(0, n)
    for t in range(20):
        L.drain()
        if t + 1 < 20:
            vneed([("w", t + 1), ("x", (t + 1) // 2)])
        a("s_barrier")
        if "st1" in FLAGS and t == int(os.environ.get("ST1", "0")):
            a("s_memrealtime s[52:53]")
        if t + WR < 20:
            vissue(("w", t + WR))
        if t % 2 == 1 and (t + 3) // 2 < 10:
            vissue(("x", (t + 3) // 2))
        if t + 1 < 20:
            x_read(t + 1)
        for n in range(12):
            k2, T = divmod(n, 6)
            c = "0" if (t == 0 and k2 == 0) else vr(O + 16 * T, 16)
            a(f"v_mfma_f32_32x32x16_bf16 {vr(O + 16 * T, 16)}, {vr(AF + n * 4, 4)}, {vr(BFR + (t % 2) * 8 + 4 * k2, 4)}, {c}")
            if t + 1 < 20:
                wq_read(t + 1, n)
    a("s_nop 15")
    for T in range(6):
        for e in range(8):
            a(f"v_cvt_pk_bf16_f32 v{QF + 8 * T + e}, v{O + 16 * T + 2 * e}, v{O + 16 * T + 2 * e + 1}")
    a("s_cmp_lt_u32 s3, 4")
    a("s_cbranch_scc1 A_att")
    for ks in range(12):
        a(f"ds_write_b128 v{QRD}, {vr(QF + 4 * ks, 4)} offset:{ks * 1024}")
    a("s_load_dwordx2 s[40:41], s[0:1], 32")
    a("s_mul_i32 s7, s2, 30720")
    a("s_mul_i32 s35, s9, 10240")
    a("s_add_u32 s7, s7, s35")
    a("v_lshlrev_b32 v16, 7, v0")
    a("v_add_u32 v17, 8192, v16")
    a("v_cmp_gt_u32 vcc, 16, v0")
    a("s_waitcnt lgkmcnt(0)")
    srd(a, (40, 40), WO_BYTES)
    a("buffer_load_dword v18, v16, s[40:43], s7 offen")
    a("s_and_saveexec_b64 s[44:45], vcc")
    a("buffer_load_dword v19, v17, s[40:43], s7 offen")
    a("s_endpgm")

    a.label("A_att")
    a("s_setprio 2")
    a(f"s_mov_b32 s32, {f32hex(CSCALE)}")
    a(f"s_mov_b32 s46, {f32hex(8.0 / CSCALE)}")
    a("s_mov_b32 s33, 0")
    a("s_mov_b32 s49, 0")
    if "stamp" in FLAGS:
        if "st1" not in FLAGS:
            a("s_memrealtime s[52:53]")
        a("s_memtime s[58:59]")

    def adv():
        a(f"s_add_u32 s33, s33, {UNIT}")
        a(f"s_cmp_eq_u32 s33, {RINGB}")
        a(f"s_cselect_b32 s33, 0, s33")

    def k_addr():
        for i in range(4):
            a(f"v_add_u32 v{KA + i}, s33, v{KB + i}")
        adv()

    def v_addr():
        a(f"v_add_u32 v{VA}, s33, v{VBE}")
        a(f"v_add_u32 v{VA + 1}, s33, v{VBO}")
        adv()

    def k_read(ks, ring=6):
        L.issue(("k", ks), f"ds_read_b128 {vr(KF + 4 * (ks % ring), 4)}, v{KA + (ks & 3)} offset:{128 * (ks >> 2)}")

    def v_read(n):
        T, j = divmod(n, 2)
        for rd in range(2):
            off = (16 * j + 8 * rd) * 384 + 64 * T
            L.issue(("v", n), f"ds_read_b64_tr_b16 {vr(VF + 4 * (n % 6) + 2 * rd, 2)}, v{VA + (T & 1)} offset:{off}")

    def sm1_ops(S, tag):
        ops = []
        ops.append(f"v_max3_f32 v{T0}, v{S}, v{S + 1}, v{VM}")
        for k in range(2, 16, 2):
            ops.append(f"v_max3_f32 v{T0}, v{S + k}, v{S + k + 1}, v{T0}")
        ops.append(f"v_mov_b32 v{T1}, v{T0}")
        ops.append("s_nop 1")
        ops.append(f"v_permlane32_swap_b32 v{T0}, v{T1}")
        ops.append(f"v_max_f32 v{T0}, v{T0}, v{T1}")
        ops.append(f"v_sub_f32 v{T1}, v{T0}, v{VM}")
        ops.append(f"v_cmp_lt_f32 vcc, s46, v{T1}")
        ops.append(f"s_cbranch_vccnz A_rare1_{tag}")
        ops.append(f"A_back1_{tag}:")
        for k in range(16):
            ops.append(f"v_fma_f32 v{S + k}, v{S + k}, s32, -v{VMC}")
        return ops

    def sm2_ops(S):
        ops = []
        for k in range(16):
            ops.append(f"v_exp_f32 v{S + k}, v{S + k}")
        for e in range(8):
            ops.append(f"v_cvt_pk_bf16_f32 v{P + e}, v{S + 2 * e}, v{S + 2 * e + 1}")
        for k in range(0, 16, 2):
            ops.append(f"v_add_f32 v{S + k}, v{S + k}, v{S + k + 1}")
        for k in range(0, 16, 4):
            ops.append(f"v_add_f32 v{S + k}, v{S + k}, v{S + k + 2}")
        ops.append(f"v_add_f32 v{S}, v{S}, v{S + 4}")
        ops.append(f"v_add_f32 v{S + 8}, v{S + 8}, v{S + 12}")
        ops.append(f"v_add_f32 v{S}, v{S}, v{S + 8}")
        ops.append(f"v_add_f32 v{VL}, v{VL}, v{S}")
        return ops

    rare = []

    def emit(op):
        if op.endswith(":"):
            a.label(op[:-1])
        else:
            a(op)

    def take(lst, n):
        for _ in range(min(n, len(lst))):
            emit(lst.pop(0))

    def rare1(tag):
        rare.append(f"A_rare1_{tag}:")
        rare.append(f"    v_sub_f32 v{VAL}, v{VM}, v{T0}")
        rare.append(f"    v_mul_f32 v{VAL}, s32, v{VAL}")
        rare.append(f"    v_exp_f32 v{VAL}, v{VAL}")
        rare.append(f"    v_mov_b32 v{VM}, v{T0}")
        rare.append(f"    v_mul_f32 v{VMC}, s32, v{T0}")
        rare.append(f"    v_mul_f32 v{VL}, v{VL}, v{VAL}")
        rare.append(f"    s_mov_b32 s47, 1")
        rare.append(f"    s_branch A_back1_{tag}")

    def rare2(tag):
        a("s_cmp_lg_u32 s47, 0")
        a(f"s_cbranch_scc1 A_rare2_{tag}")
        a.label(f"A_back2_{tag}")
        rare.append(f"A_rare2_{tag}:")
        rare.append("    s_nop 15")
        for i in range(96):
            rare.append(f"    v_mul_f32 v{O + i}, v{O + i}, v{VAL}")
        rare.append("    s_mov_b32 s47, 0")
        rare.append(f"    s_branch A_back2_{tag}")

    EXPB = 3

    def cost(op):
        if op.endswith(":"):
            return 0
        if op.startswith("v_exp") or op.startswith("s_nop 1"):
            return 8
        return 4

    def fill(lst, budget):
        while lst and cost(lst[0]) <= budget:
            budget -= cost(lst[0])
            emit(lst.pop(0))

    GB = 24

    def iteration(cur, nxt, tag, qk=True, knext=True):
        rare2(tag)
        allf = sm2_ops(cur)[EXPB:]
        f = allf[:len(allf) - 16]
        sums = allf[len(allf) - 16:]
        for ks in range(12):
            b = GB
            if qk:
                if ks % 2 == 0:
                    L.need(("k", ks + 1))
                    b -= 4
                c = "0" if ks == 0 else vr(nxt, 16)
                a(f"v_mfma_f32_32x32x16_bf16 {vr(nxt, 16)}, {vr(KF + 4 * (ks % 6), 4)}, {vr(QF + 4 * ks, 4)}, {c}")
                if ks % 2 == 1 and ks + 5 < 12:
                    k_read(ks + 5)
                    k_read(ks + 6)
                    b -= 8
            if ks == 6:
                v_addr()
                b -= 20
            if ks == 8:
                L.drain()
                a("s_barrier")
                b -= 8
            if ks in (8, 9, 10):
                v_read(2 * (ks - 8))
                v_read(2 * (ks - 8) + 1)
                b -= 16
            fill(f, max(b, 8) if ks < 11 else 999)
        g = []
        if qk:
            g = sm1_ops(nxt, tag) + sm2_ops(nxt)[:EXPB]
            rare1(tag)
        for n in range(12):
            T, j = divmod(n, 2)
            b = GB
            if n % 2 == 0:
                L.need(("v", n + 1))
                b -= 4
            a(f"v_mfma_f32_32x32x16_bf16 {vr(O + 16 * T, 16)}, {vr(VF + 4 * (n % 6), 4)}, {vr(P + 4 * j, 4)}, {vr(O + 16 * T, 16)}")
            if n % 2 == 1 and n + 5 < 12:
                v_read(n + 5)
                v_read(n + 6)
                b -= 16
            if knext:
                if n == 6:
                    k_addr()
                    b -= 28
                if n == 8:
                    L.drain()
                    a("s_barrier")
                    b -= 8
                if n in (8, 9, 10):
                    k_read(2 * (n - 8))
                    k_read(2 * (n - 8) + 1)
                    b -= 8
            if n < 3:
                fill(sums, 24 if n < 2 else 999)
            else:
                fill(g, max(b + 8, 8) if n < 11 else 999)

    if "nocompute" in FLAGS:
        a("s_mov_b32 s34, 0")
        a.label("A_nc")
        a("s_barrier")
        a("s_add_u32 s34, s34, 1")
        a("s_cmp_lt_u32 s34, 128")
        a("s_cbranch_scc1 A_nc")
        a("s_branch A_fin")
    a.label("A_item")
    a.novalu = "novalu" in FLAGS
    a.nolds = "nolds" in FLAGS
    a.nomfma = "nomfma" in FLAGS
    for i in range(96):
        a(f"v_mov_b32 v{O + i}, 0")
    a(f"v_mov_b32 v{VM}, 0xff800000")
    a(f"v_mov_b32 v{VL}, 0")
    a("s_mov_b32 s47, 0")
    k_addr()
    L.drain()
    a("s_barrier")
    for ks in range(12):
        k_read(ks, ring=12)
    for ks in range(12):
        L.need(("k", ks))
        c = "0" if ks == 0 else vr(SA, 16)
        a(f"v_mfma_f32_32x32x16_bf16 {vr(SA, 16)}, {vr(KF + 4 * ks, 4)}, {vr(QF + 4 * ks, 4)}, {c}")
    k_addr()
    a("s_barrier")
    for ks in range(6):
        k_read(ks)
    a("s_nop 4")
    g = sm1_ops(SA, "p") + sm2_ops(SA)[:EXPB]
    rare1("p")
    take(g, 99)
    a("s_mov_b32 s34, 0")
    q0 = list(L.q)
    a.label("A_loop")
    iteration(SA, SB, "e")
    iteration(SB, SA, "o")
    assert L.q == q0, (L.q, q0)
    a("s_add_u32 s34, s34, 1")
    a("s_cmp_lt_u32 s34, 15")
    a("s_cbranch_scc1 A_loop")
    iteration(SA, SB, "e2", knext=False)
    iteration(SB, SA, "o2", qk=False, knext=False)
    for ks in range(12):
        L.issue(("q",), f"ds_read_b128 {vr(QF + 4 * ks, 4)}, v{QRD} offset:{ks * 1024}")
    a(f"v_mov_b32 v{T1}, v{VL}")
    a("s_nop 1")
    a(f"v_permlane32_swap_b32 v{VL}, v{T1}")
    a(f"v_add_f32 v{VL}, v{VL}, v{T1}")
    a(f"v_rcp_f32 v{T1}, v{VL}")
    a("s_mul_i32 s7, s4, 3")
    a("s_add_u32 s7, s7, s3")
    a("s_mul_i32 s7, s7, 384")
    a("s_mul_i32 s35, s5, 12")
    a("s_add_u32 s7, s7, s35")
    a("s_lshl_b32 s7, s7, 10")
    a(f"v_lshlrev_b32 v{T2}, 4, v0")
    a("s_nop 7")
    for T in range(6):
        for g in range(4):
            for e in range(2):
                r = O + 16 * T + 4 * g + 2 * e
                a(f"v_mul_f32 v{r}, v{r}, v{T1}")
                a(f"v_mul_f32 v{r + 1}, v{r + 1}, v{T1}")
        for g in range(4):
            for e in range(2):
                r = O + 16 * T + 4 * g + 2 * e
                a(f"v_cvt_pk_bf16_f32 v{KF + 8 * T + 2 * g + e}, v{r}, v{r + 1}")
        a("s_nop 1")
        for g in (0, 2):
            d = KF + 8 * T + 2 * g
            a(f"v_permlane32_swap_b32 v{d}, v{d + 2}")
            a(f"v_permlane32_swap_b32 v{d + 1}, v{d + 3}")
        for g in (0, 2):
            d = KF + 8 * T + 2 * g
            a(f"buffer_store_dwordx4 {vr(d, 4)}, v{T2}, s[24:27], s7 offen offset:{512 * g}{OST}")
        a("s_add_u32 s7, s7, 2048")
    a("s_add_u32 s4, s4, 8")
    a("s_add_u32 s49, s49, 1")
    a("s_cmp_lt_u32 s49, 2")
    a("s_cbranch_scc0 A_fin")
    a("s_waitcnt vmcnt(0)")
    a("s_branch A_item")
    a.label("A_fin")
    a.novalu = a.nolds = a.nomfma = False
    if "stamp" in FLAGS:
        a("s_memrealtime s[54:55]")
        a("s_memtime s[60:61]")
        a("s_waitcnt lgkmcnt(0)")
        a("s_sub_u32 s56, s60, s58")
        a("s_mov_b32 s26, 0x7fffffff")
        a("v_mov_b32 v4, s50")
        a("v_mov_b32 v5, s52")
        a("v_mov_b32 v6, s54")
        a("v_mov_b32 v7, s56")
        a("s_lshl_b32 s7, s2, 2")
        a("s_add_u32 s7, s7, s3")
        a("s_lshl_b32 s7, s7, 4")
        a("s_add_u32 s7, s7, 0x4000000")
        a("v_mov_b32 v8, 0")
        a("buffer_store_dwordx4 v[4:7], v8, s[24:27], s7 offen")
    a("s_endpgm")
    a.l.extend(rare)

    seq = []
    for r in range(2):
        seq.append(('K', r, 0))
        for i in range(31):
            seq.append(('K', r, i + 1))
            seq.append(('V', r, i))
        seq.append(('V', r, 31))
    N = len(seq)
    for who in "KV":
        a.label(f"A_load{who}")
        a("s_setprio 3")
        OF = 32
        for j in range(12):
            a(f"v_add_u32 v25, {64 * j}, v0")
            div24(a, 26, 27, 25, 28)
            if who == "K":
                a("v_bfe_u32 v28, v26, 1, 3")
            else:
                a("v_bfe_u32 v28, v26, 1, 1")
                a("v_lshlrev_b32 v28, 2, v28")
            a("v_xor_b32 v29, v27, v28")
            a("v_mul_u32_u24 v26, 384, v26")
            a(f"v_lshl_add_u32 v{OF + j}, v29, 4, v26")
        rs = "s[8:11]" if who == "K" else "s[12:15]"

        def issue(u):
            if u[2] == 0 and u[1] == 1:
                a(f"s_add_u32 s29, s6, {8 * 32 * 393216}")
            if "noload" not in FLAGS:
                for j in range(12):
                    a(f"s_add_u32 m0, s31, {j * 1024}")
                    a("s_nop 0")
                    a(f"buffer_load_dwordx4 v{OF + j}, {rs}, s29 offen {NT}lds")
            a("s_add_u32 s29, s29, 12288")

        def nextslot():
            a(f"s_add_u32 s31, s31, {UNIT}")
            a(f"s_cmp_eq_u32 s31, {RINGB}")
            a("s_cselect_b32 s31, 0, s31")

        if "coop" in FLAGS:
            a("s_lshr_b32 s7, s2, 3")
            if who == "K":
                a("s_and_b32 s35, s2, 7")
                a("s_mul_i32 s35, s35, 1536")
                a(f"s_mul_i32 s7, s7, {20 * 12288}")
                a("s_add_u32 s7, s7, s35")
                for j in range(4):
                    a(f"v_add_u32 v25, {64 * j}, v0")
                    if j == 3:
                        a("v_min_u32 v25, 239, v25")
                    a("v_mul_u32_u24 v26, 5462, v25")
                    a("v_lshrrev_b32 v26, 16, v26")
                    a("v_mul_u32_u24 v27, 12, v26")
                    a("v_sub_u32 v27, v25, v27")
                    a("v_mul_u32_u24 v26, 12288, v26")
                    a("v_lshl_add_u32 v26, v27, 7, v26")
                    a("buffer_load_dword v31, v26, s[16:19], s7 offen")
            else:
                a("s_mul_i32 s7, s7, 61440")
                a("v_lshlrev_b32 v26, 7, v0")
                for j in range(8):
                    if j == 7:
                        a("v_min_u32 v26, 61312, v26")
                    a("buffer_load_dword v31, v26, s[20:23], s7 offen")
                    a("v_add_u32 v26, 8192, v26")
        a("s_mov_b32 s29, s6")
        a("s_mov_b32 s31, 0")
        nini = 0
        for n in range(KV0):
            if seq[n][0] == who:
                issue(seq[n])
                nini += 12
            nextslot()
        if "coop" in FLAGS:
            a(f"s_waitcnt vmcnt({0 if 'noload' in FLAGS else nini})")
            a("s_barrier")
        PF = int(os.environ.get("PF", "0"))
        if PF:
            a("v_lshlrev_b32 v26, 7, v0")
            a("s_mov_b32 s35, s29")
            for i in range(PF * 96 // 64):
                a(f"buffer_load_dword v31, v26, {rs}, s35 offen")
                a("s_add_u32 s35, s35, 8192")
        for i in range(21):
            a("s_barrier")
        for n in range(KV0, RING - 1):
            if seq[n][0] == who:
                issue(seq[n])
            nextslot()
        ev = []
        for n in range(N):
            upto = min(N - 1, n + RING - 2)
            w = None
            if seq[n][0] == who:
                w = sum(1 for m in range(n + 1, upto + 1) if seq[m][0] == who) * 12
                assert w <= 63
            m = n + RING - 1
            iss = seq[m] if (m < N and seq[m][0] == who) else None
            key = (w, None if iss is None else (iss[2] == 0 and iss[1] == 1))
            ev.append((key, iss))

        def step(e):
            (w, _), iss = e
            if w is not None:
                a(f"s_waitcnt vmcnt({w})")
            a("s_barrier")
            if iss is not None:
                issue(iss)
            nextslot()

        n = 0
        while n < N:
            k = n
            while k + 2 < N and ev[k + 2][0] == ev[k][0]:
                k += 1
            reps = (k + 2 - n) // 2
            if reps >= 4:
                lab = a.newlabel(f"A_l{who}")
                a("s_mov_b32 s34, 0")
                a.label(lab)
                step(ev[n])
                step(ev[n + 1])
                a("s_add_u32 s34, s34, 1")
                a(f"s_cmp_lt_u32 s34, {reps}")
                a(f"s_cbranch_scc1 {lab}")
                n += 2 * reps
            else:
                step(ev[n])
                n += 1
        a("s_endpgm")
    a.label("A_done")
    a("s_endpgm")


NCH = 8
LDS2 = 4 * NCH * 4096


def gen_oproj(a):
    K = "oproj_kernel"
    a.l.append(f".globl {K}\n.p2align 8\n.type {K},@function\n{K}:")
    a("s_cmp_ge_u32 s2, 240")
    a("s_cbranch_scc1 B_done")
    a("s_load_dwordx4 s[36:39], s[0:1], 32")
    a("s_load_dwordx2 s[44:45], s[0:1], 56")
    a("v_lshrrev_b32 v1, 6, v0")
    a("v_and_b32 v0, 63, v0")
    a("s_and_b32 s4, s2, 7")
    a("s_lshr_b32 s5, s2, 3")
    a("v_readfirstlane_b32 s3, v1")
    a("s_mul_i32 s6, s5, 205")
    a("s_lshr_b32 s6, s6, 11")
    a("s_mul_i32 s7, s6, 10")
    a("s_sub_u32 s7, s5, s7")
    a("s_mul_i32 s4, s4, 3")
    a("s_add_u32 s6, s6, s4")
    a("s_waitcnt lgkmcnt(0)")
    srd(a, (8, 36), WO_BYTES)
    srd(a, (12, 44), O_BYTES)
    srd(a, (16, 38), OUT_BYTES)
    ACC, OF, AF = 64, 128, 32
    WOFF, OOFF, RBE, RBO = 8, 12, 14, 15
    a("v_and_b32 v1, 31, v0")
    a("v_lshrrev_b32 v2, 5, v0")
    a("v_and_b32 v3, 15, v0")
    a("v_bfe_u32 v4, v0, 4, 1")
    a("v_lshrrev_b32 v5, 2, v3")
    a("v_and_b32 v6, 3, v3")
    for jj in range(4):
        a(f"v_add_u32 v25, {64 * jj}, v0")
        a("v_lshrrev_b32 v26, 3, v25")
        a("v_and_b32 v27, 7, v25")
        a("v_bfe_u32 v28, v26, 1, 1")
        a("v_lshlrev_b32 v28, 2, v28")
        a("v_xor_b32 v27, v27, v28")
        a("v_mul_u32_u24 v26, 1280, v26")
        a(f"v_lshl_add_u32 v{WOFF + jj}, v27, 4, v26")
    a("v_lshl_add_u32 v25, v2, 3, v5")
    a("v_lshlrev_b32 v25, 7, v25")
    a("v_lshrrev_b32 v26, 1, v6")
    a("v_lshl_add_u32 v26, v4, 1, v26")
    a("v_lshl_add_u32 v25, v26, 4, v25")
    a("v_and_b32 v26, 1, v6")
    a("v_lshl_add_u32 v25, v26, 3, v25")
    a(f"s_mul_i32 s20, s3, {NCH * 4096}")
    a("v_add_u32 v25, s20, v25")
    a("v_lshrrev_b32 v26, 1, v5")
    a("v_lshlrev_b32 v26, 6, v26")
    a(f"v_add_u32 v{RBE}, v25, v26")
    a(f"v_sub_u32 v{RBO}, v25, v26")
    a(f"s_mul_i32 s21, s6, {2 * 384 * 1024}")
    a(f"v_lshl_add_u32 v{OOFF}, v0, 4, s21")
    a(f"v_add_u32 v{OOFF + 1}, {384 * 1024}, v{OOFF}")
    a("s_mul_i32 s23, s3, 1966080")
    a("s_lshl_b32 s24, s7, 7")
    a("s_add_u32 s26, s23, s24")
    a("s_mul_i32 s27, s3, 98304")
    a("s_mul_i32 s28, s5, 13")
    a("s_lshr_b32 s28, s28, 3")
    a("s_mov_b32 s28, 0")

    def issue(slot):
        a("s_mul_i32 s23, s28, 40960")
        a("s_add_u32 s23, s23, s26")
        a("s_lshl_b32 s24, s28, 11")
        a("s_add_u32 s24, s24, s27")
        for jj in range(4):
            a(f"s_add_u32 m0, s20, {slot * 4096 + jj * 1024}")
            a("s_nop 0")
            a(f"buffer_load_dwordx4 v{WOFF + jj}, s[8:11], s23 offen lds")
        for k2 in range(2):
            for tt in range(2):
                a(f"buffer_load_dwordx4 {vr(OF + slot * 16 + (k2 * 2 + tt) * 4, 4)}, v{OOFF + tt}, s[12:15], s24 offen offset:{k2 * 1024}")
        a("s_add_u32 s28, s28, 1")
        a("s_cmp_eq_u32 s28, 48")
        a("s_cselect_b32 s28, 0, s28")

    for i in range(64):
        a(f"v_mov_b32 v{ACC + i}, 0")
    for s in range(NCH - 1):
        issue(s)
    a("s_mov_b32 s25, 0")
    a.label("B_loop")
    for s in range(NCH):
        a(f"s_waitcnt vmcnt({8 * (NCH - 2)})")
        issue((s + NCH - 1) % NCH)
        for k2 in range(2):
            for T in range(2):
                base = RBE if T == 0 else RBO
                for rd in range(2):
                    off = s * 4096 + (16 * k2 + 4 * rd) * 128 + 64 * T
                    a(f"ds_read_b64_tr_b16 {vr(AF + (k2 * 2 + T) * 4 + 2 * rd, 2)}, v{base} offset:{off}")
        for k2 in range(2):
            for T in range(2):
                a(f"s_waitcnt lgkmcnt({8 - 2 * (k2 * 2 + T + 1)})")
                for tt in range(2):
                    acc = ACC + (T * 2 + tt) * 16
                    a(f"v_mfma_f32_32x32x16_bf16 {vr(acc, 16)}, {vr(AF + (k2 * 2 + T) * 4, 4)}, {vr(OF + s * 16 + (k2 * 2 + tt) * 4, 4)}, {vr(acc, 16)}")
    a("s_add_u32 s25, s25, 1")
    a(f"s_cmp_lt_u32 s25, {48 // NCH}")
    a("s_cbranch_scc1 B_loop")
    a("s_waitcnt vmcnt(0)")
    a("s_barrier")
    a("v_lshlrev_b32 v25, 4, v0")
    a("s_lshl_b32 s21, s3, 14")
    a("v_add_u32 v26, s21, v25")
    a("s_nop 7")
    for i in range(16):
        a(f"ds_write_b128 v26, {vr(ACC + 4 * i, 4)} offset:{i * 1024}")
    a("s_waitcnt lgkmcnt(0)")
    a("s_barrier")
    a("s_lshl_b32 s21, s3, 12")
    a("v_add_u32 v26, s21, v25")
    for w in range(4):
        for g in range(4):
            a(f"ds_read_b128 {vr(ACC + 16 * w + 4 * g, 4)}, v26 offset:{w * 16384 + g * 1024}")
    a("s_waitcnt lgkmcnt(0)")
    for i in range(16):
        a(f"v_add_f32 v{ACC + i}, v{ACC + i}, v{ACC + 16 + i}")
        a(f"v_add_f32 v{ACC + 32 + i}, v{ACC + 32 + i}, v{ACC + 48 + i}")
    for i in range(16):
        a(f"v_add_f32 v{ACC + i}, v{ACC + i}, v{ACC + 32 + i}")
    for g in range(4):
        for e in range(2):
            a(f"v_cvt_pk_bf16_f32 v{AF + 2 * g + e}, v{ACC + 4 * g + 2 * e}, v{ACC + 4 * g + 2 * e + 1}")
    a("s_lshr_b32 s21, s3, 1")
    a("s_and_b32 s22, s3, 1")
    a("s_lshl_b32 s23, s6, 6")
    a("s_lshl_b32 s22, s22, 5")
    a("s_add_u32 s23, s23, s22")
    a("v_add_u32 v25, s23, v1")
    a("v_mul_u32_u24 v25, 1280, v25")
    a("v_lshl_add_u32 v25, v2, 4, v25")
    a("s_lshl_b32 s23, s7, 7")
    a("s_lshl_b32 s21, s21, 6")
    a("s_add_u32 s23, s23, s21")
    for g in (0, 2):
        d = AF + 2 * g
        a(f"v_permlane32_swap_b32 v{d}, v{d + 2}")
        a(f"v_permlane32_swap_b32 v{d + 1}, v{d + 3}")
    for g in (0, 2):
        d = AF + 2 * g
        a(f"buffer_store_dwordx4 {vr(d, 4)}, v25, s[16:19], s23 offen offset:{16 * g}")
    a.label("B_done")
    a("s_endpgm")


def descriptor(name, vgpr):
    return f""".p2align 6
.amdhsa_kernel {name}
  .amdhsa_next_free_vgpr {vgpr}
  .amdhsa_next_free_sgpr 64
  .amdhsa_accum_offset {vgpr}
  .amdhsa_group_segment_fixed_size 0
  .amdhsa_kernarg_size 64
  .amdhsa_user_sgpr_count 2
  .amdhsa_user_sgpr_kernarg_segment_ptr 1
  .amdhsa_system_sgpr_workgroup_id_x 1
.end_amdhsa_kernel
"""


def main():
    ref = open(f"cdna_kernels/{NAME}.s.ref").read().splitlines()
    head = [l for l in ref if l.startswith(";") and "@launch" not in l and "Override" not in l and "grid=ceil" not in l]
    a = Asm()
    out = "\n".join(head) + "\n"
    out += f"; @launch kernel=attn_kernel grid=(256,1,1) block=(512,1,1) lds={LDS1}\n"
    out += f"; @launch kernel=oproj_kernel grid=(240,1,1) block=(256,1,1) lds={LDS2}\n"
    out += '.amdgcn_target "amdgcn-amd-amdhsa--gfx950"\n.text\n'
    gen_attn(a)
    gen_oproj(a)
    out += a.text()
    out += '.section .rodata,"a"\n'
    out += descriptor("attn_kernel", 256)
    out += descriptor("oproj_kernel", 256)
    dst = sys.argv[1] if len(sys.argv) > 1 else f"cdna_kernels/{NAME}.s"
    open(dst, "w").write(out)


if __name__ == "__main__":
    main()
```

```python
import math, sys, os
FLAGS = os.environ.get("GENFLAGS", "").split(",")

NAME = "standalone__mha_block_cached__near_ridge"
B, SQ, D, H, SK, DH = 16, 96, 640, 32, 1024, 192
KV_BYTES = B * H * SK * DH * 2
X_BYTES = B * SQ * D * 2
WQ_BYTES = D * H * DH * 2
WO_BYTES = H * DH * D * 2
OUT_BYTES = B * SQ * D * 2
O_BYTES = B * SQ * H * DH * 2
UNIT = 12288
NSLOT = 6
LDS1 = UNIT * NSLOT
WQF = os.environ.get("WQF", "")
if WQF: WQF += " "
OST = os.environ.get("OST", "sc1")
if OST: OST = " " + OST
NT = "nt " if "nt" in FLAGS else ""
CSCALE = (DH ** -0.5) * math.log2(math.e)


class Asm:
    def __init__(self):
        self.l = []
        self.n = 0

    def __call__(self, s):
        if getattr(self, "nobar", False) and s == "s_barrier":
            return
        if getattr(self, "novalu", False) and (s.startswith("v_exp") or s.startswith("v_fma") or s.startswith("v_add_f32") or s.startswith("v_max3") or s.startswith("v_cvt")):
            return
        if getattr(self, "nolds", False) and s.startswith("ds_read"):
            return
        if getattr(self, "nomfma", False) and s.startswith("v_mfma"):
            return
        self.l.append("    " + s)

    def label(self, s):
        self.l.append(s + ":")

    def c(self, s):
        self.l.append("    ; " + s)

    def newlabel(self, p="L"):
        self.n += 1
        return f"{p}_{self.n}"

    def text(self):
        return "\n".join(self.l) + "\n"


def f32hex(x):
    import struct
    return "0x%08x" % struct.unpack("<I", struct.pack("<f", x))[0]


def vr(a, n):
    return f"v[{a}:{a + n - 1}]"


def srd(a, base, nbytes):
    a(f"s_mov_b32 s{base[0]}, s{base[1]}")
    a(f"s_and_b32 s{base[0] + 1}, s{base[1] + 1}, 0xffff")
    a(f"s_mov_b32 s{base[0] + 2}, {nbytes}")
    a(f"s_mov_b32 s{base[0] + 3}, 0x00020000")


def div24(a, vdst_q, vdst_r, vsrc, vt):
    a(f"v_mul_u32_u24 v{vdst_q}, 2731, v{vsrc}")
    a(f"v_lshrrev_b32 v{vdst_q}, 16, v{vdst_q}")
    a(f"v_mul_u32_u24 v{vt}, 24, v{vdst_q}")
    a(f"v_sub_u32 v{vdst_r}, v{vsrc}, v{vt}")


class LdsQ:
    def __init__(self, a):
        self.a = a
        self.q = []

    def issue(self, tag, text):
        self.a(text)
        self.q.append(tag)

    def need(self, tag):
        idx = max((i for i, t in enumerate(self.q) if t == tag), default=-1)
        if idx < 0:
            return
        n = len(self.q) - 1 - idx
        self.a(f"s_waitcnt lgkmcnt({min(n, 15)})")
        self.q = self.q[idx + 1:] if n <= 15 else self.q[len(self.q) - 15:]

    def drain(self):
        self.a("s_waitcnt lgkmcnt(0)")
        self.q = []


RING = 10
RINGB = RING * UNIT
LDS1 = RINGB + 3 * UNIT
R1 = 8
KV0 = 5


def gen_attn(a):
    K = "attn_kernel"
    a.l.append(f".globl {K}\n.p2align 8\n.type {K},@function\n{K}:")
    a("s_cmp_ge_u32 s2, 256")
    a("s_cbranch_scc1 A_done")
    a("s_load_dwordx8 s[36:43], s[0:1], 0")
    a("s_load_dwordx2 s[44:45], s[0:1], 56")
    a("v_lshrrev_b32 v1, 6, v0")
    a("v_and_b32 v0, 63, v0")
    a("s_lshr_b32 s4, s2, 5")
    a("s_and_b32 s5, s2, 7")
    a("s_lshl_b32 s5, s5, 2")
    a("s_bfe_u32 s7, s2, 0x20003")
    a("s_add_u32 s5, s5, s7")
    a("v_readfirstlane_b32 s3, v1")
    a("s_lshl_b32 s6, s4, 5")
    a("s_add_u32 s6, s6, s5")
    a("s_mul_i32 s6, s6, 393216")
    a("s_waitcnt lgkmcnt(0)")
    srd(a, (8, 38), KV_BYTES)
    srd(a, (12, 40), KV_BYTES)
    srd(a, (16, 42), WQ_BYTES)
    srd(a, (20, 36), X_BYTES)
    srd(a, (24, 44), O_BYTES)
    if "stamp" in FLAGS:
        a("s_memrealtime s[50:51]")
    a("s_cmp_eq_u32 s3, 3")
    a("s_cbranch_scc1 A_loadK")
    a("s_cmp_eq_u32 s3, 7")
    a("s_cbranch_scc1 A_loadV")

    KB, VBE, VBO = 4, 8, 9
    KA, VA = 10, 14
    VM, VL, VMC, VAL = 16, 17, 18, 19
    T0, T1, T2, T3 = 20, 21, 22, 23
    QF, O, SA, SB, P, KF, VF = 24, 72, 168, 184, 200, 208, 232
    QRD = 1
    WOFF, WBE, WBO = 2, 11, 12
    AF = KF
    L = LdsQ(a)

    XW, XB, BFR = 15, 20, SA
    a("s_and_b32 s9, s3, 3")
    a("s_lshr_b32 s10, s3, 2")
    a("s_mul_i32 s11, s10, 3")
    a("s_add_u32 s11, s11, s9")
    q_, hf_, lp_, g1_, rr_, cc_, t5, t6, t7, t8 = range(KF, KF + 10)
    a("s_lshl_b32 s7, s11, 7")
    for jj in range(2):
        a(f"v_add_u32 v{t5}, s7, v0")
        if jj:
            a(f"v_add_u32 v{t5}, 64, v{t5}")
        div24(a, t6, t7, t5, t8)
        a(f"v_bfe_u32 v{t8}, v{t6}, 1, 1")
        a(f"v_lshlrev_b32 v{t8}, 2, v{t8}")
        a(f"v_xor_b32 v{t7}, v{t7}, v{t8}")
        a(f"v_mul_u32_u24 v{t6}, 12288, v{t6}")
        a(f"v_lshl_add_u32 v{WOFF + jj}, v{t7}, 4, v{t6}")
    for jj in range(4):
        a(f"v_add_u32 v{t5}, {64 * jj}, v0")
        a(f"v_lshrrev_b32 v{t6}, 3, v{t5}")
        a(f"v_and_b32 v{t7}, 7, v{t5}")
        a(f"v_bfe_u32 v{t8}, v{t6}, 1, 3")
        a(f"v_xor_b32 v{t7}, v{t7}, v{t8}")
        a(f"v_mul_u32_u24 v{t6}, 1280, v{t6}")
        a(f"v_lshl_add_u32 v{XW + jj}, v{t7}, 4, v{t6}")
    a("s_mul_i32 s29, s5, 384")
    a("s_lshl_b32 s7, s10, 3")
    a("s_add_u32 s7, s7, s4")
    a("s_mul_i32 s30, s7, 122880")
    a("s_mul_i32 s7, s9, 40960")
    a("s_add_u32 s30, s30, s7")
    a("s_lshl_b32 s28, s11, 11")
    a("s_lshl_b32 s48, s11, 12")

    WR = 4

    def wslot(t):
        i = t % WR
        return RINGB + i * UNIT if i < 3 else 9 * UNIT

    def xslot(u):
        return (5 + 2 * (u % 2)) * UNIT

    def w_issue(t):
        a(f"s_add_u32 s31, s29, {t * 32 * 12288}")
        for jj in range(2):
            a(f"s_add_u32 m0, s28, {wslot(t) + jj * 1024}")
            a("s_nop 0")
            a(f"buffer_load_dwordx4 v{WOFF + jj}, s[16:19], s31 offen lds")

    def x_issue(u):
        a(f"s_add_u32 s31, s30, {u * 128}")
        for jj in range(4):
            a(f"s_add_u32 m0, s48, {xslot(u) + jj * 1024}")
            a("s_nop 0")
            a(f"buffer_load_dwordx4 v{XW + jj}, s[20:23], s31 offen lds")

    vq = []

    def vissue(tag):
        if tag[0] == "w":
            w_issue(tag[1]); vq.append((tag, 2))
        else:
            x_issue(tag[1]); vq.append((tag, 4))

    def vneed(tags):
        idx = max((i for i, (t_, _) in enumerate(vq) if t_ in tags), default=-1)
        if idx < 0:
            return
        n = sum(c for _, c in vq[idx + 1:])
        a(f"s_waitcnt vmcnt({n})")
        del vq[:idx + 1]

    vissue(("w", 0)); vissue(("x", 0)); vissue(("w", 1)); vissue(("w", 2)); vissue(("x", 1)); vissue(("w", 3))
    a(f"v_and_b32 v{q_}, 31, v0")
    a(f"v_lshrrev_b32 v{hf_}, 5, v0")
    a(f"v_and_b32 v{lp_}, 15, v0")
    a(f"v_bfe_u32 v{g1_}, v0, 4, 1")
    a(f"v_lshrrev_b32 v{rr_}, 2, v{lp_}")
    a(f"v_and_b32 v{cc_}, 3, v{lp_}")
    a(f"v_bfe_u32 v{t5}, v{q_}, 1, 3")
    a(f"v_xor_b32 v{t5}, v{hf_}, v{t5}")
    a(f"v_mul_u32_u24 v{t6}, 384, v{q_}")
    a(f"v_lshl_add_u32 v{t8}, v{q_}, 7, s48")
    a(f"v_add_u32 v{t8}, {5 * UNIT}, v{t8}")
    for i in range(4):
        a(f"v_xor_b32 v{t7}, {2 * i}, v{t5}")
        a(f"v_lshl_add_u32 v{KB + i}, v{t7}, 4, v{t6}")
        a(f"v_lshl_add_u32 v{XB + i}, v{t7}, 4, v{t8}")
    a(f"v_lshl_add_u32 v{t5}, v{hf_}, 2, v{rr_}")
    a(f"v_mul_u32_u24 v{t5}, 384, v{t5}")
    a(f"v_lshrrev_b32 v{t6}, 1, v{cc_}")
    a(f"v_lshl_add_u32 v{t6}, v{g1_}, 1, v{t6}")
    a(f"v_lshl_add_u32 v{t5}, v{t6}, 4, v{t5}")
    a(f"v_and_b32 v{t6}, 1, v{cc_}")
    a(f"v_lshl_add_u32 v{t5}, v{t6}, 3, v{t5}")
    a(f"v_lshrrev_b32 v{t6}, 1, v{rr_}")
    a(f"v_lshlrev_b32 v{t6}, 6, v{t6}")
    a(f"v_add_u32 v{VBE}, v{t5}, v{t6}")
    a(f"v_sub_u32 v{VBO}, v{t5}, v{t6}")
    a(f"v_lshl_add_u32 v{t5}, v{hf_}, 3, v{rr_}")
    a(f"v_mul_u32_u24 v{t5}, 384, v{t5}")
    a(f"v_and_b32 v{t7}, 1, v{cc_}")
    a(f"v_lshl_add_u32 v{t7}, v{g1_}, 1, v{t7}")
    a(f"v_lshl_add_u32 v{t5}, v{t7}, 4, v{t5}")
    a(f"v_lshrrev_b32 v{t7}, 1, v{cc_}")
    a(f"v_lshl_add_u32 v{t5}, v{t7}, 3, v{t5}")
    a(f"v_add_u32 v{t5}, {9 * UNIT}, v{t5}")
    a(f"v_add_u32 v{WBE}, v{t5}, v{t6}")
    a(f"v_sub_u32 v{WBO}, v{t5}, v{t6}")
    a(f"s_mul_i32 s7, s9, {UNIT}")
    a(f"s_add_u32 s7, s7, {RINGB}")
    a(f"v_lshl_add_u32 v{QRD}, v0, 4, s7")

    def wq_read(t, n):
        k2, T = divmod(n, 6)
        so = wslot(t) - 9 * UNIT
        base = WBE if T % 2 == 0 else WBO
        for rd in range(2):
            off = so + (16 * k2 + 4 * rd) * 384 + 64 * T
            L.issue(("w", t, n), f"ds_read_b64_tr_b16 {vr(AF + n * 4 + 2 * rd, 2)}, v{base} offset:{off}")

    def x_read(t):
        for k2 in range(2):
            L.issue(("x", t), f"ds_read_b128 {vr(BFR + (t % 2) * 8 + 4 * k2, 4)}, v{XB + 2 * (t % 2) + k2} offset:{xslot(t // 2) - 5 * UNIT}")

    vneed([("w", 0), ("x", 0)])
    a("s_barrier")
    x_read(0)
    for n in range(12):
        wq_read(0, n)
    for t in range(20):
        L.drain()
        if t + 1 < 20:
            vneed([("w", t + 1), ("x", (t + 1) // 2)])
        a("s_barrier")
        if "st1" in FLAGS and t == int(os.environ.get("ST1", "0")):
            a("s_memrealtime s[52:53]")
        if t + WR < 20:
            vissue(("w", t + WR))
        if t % 2 == 1 and (t + 3) // 2 < 10:
            vissue(("x", (t + 3) // 2))
        if t + 1 < 20:
            x_read(t + 1)
        for n in range(12):
            k2, T = divmod(n, 6)
            c = "0" if (t == 0 and k2 == 0) else vr(O + 16 * T, 16)
            a(f"v_mfma_f32_32x32x16_bf16 {vr(O + 16 * T, 16)}, {vr(AF + n * 4, 4)}, {vr(BFR + (t % 2) * 8 + 4 * k2, 4)}, {c}")
            if t + 1 < 20:
                wq_read(t + 1, n)
    a("s_nop 15")
    for T in range(6):
        for e in range(8):
            a(f"v_cvt_pk_bf16_f32 v{QF + 8 * T + e}, v{O + 16 * T + 2 * e}, v{O + 16 * T + 2 * e + 1}")
    a("s_cmp_lt_u32 s3, 4")
    a("s_cbranch_scc1 A_att")
    for ks in range(12):
        a(f"ds_write_b128 v{QRD}, {vr(QF + 4 * ks, 4)} offset:{ks * 1024}")
    a("s_load_dwordx2 s[40:41], s[0:1], 32")
    a("s_mul_i32 s7, s2, 30720")
    a("s_mul_i32 s35, s9, 10240")
    a("s_add_u32 s7, s7, s35")
    a("v_lshlrev_b32 v16, 7, v0")
    a("v_add_u32 v17, 8192, v16")
    a("v_cmp_gt_u32 vcc, 16, v0")
    a("s_waitcnt lgkmcnt(0)")
    srd(a, (40, 40), WO_BYTES)
    a("buffer_load_dword v18, v16, s[40:43], s7 offen")
    a("s_and_saveexec_b64 s[44:45], vcc")
    a("buffer_load_dword v19, v17, s[40:43], s7 offen")
    a("s_endpgm")

    a.label("A_att")
    a("s_setprio 2")
    a(f"s_mov_b32 s32, {f32hex(CSCALE)}")
    a(f"s_mov_b32 s46, {f32hex(8.0 / CSCALE)}")
    a("s_mov_b32 s33, 0")
    a("s_mov_b32 s49, 0")
    if "stamp" in FLAGS:
        if "st1" not in FLAGS:
            a("s_memrealtime s[52:53]")
        a("s_memtime s[58:59]")

    def adv():
        a(f"s_add_u32 s33, s33, {UNIT}")
        a(f"s_cmp_eq_u32 s33, {RINGB}")
        a(f"s_cselect_b32 s33, 0, s33")

    def k_addr():
        for i in range(4):
            a(f"v_add_u32 v{KA + i}, s33, v{KB + i}")
        adv()

    def v_addr():
        a(f"v_add_u32 v{VA}, s33, v{VBE}")
        a(f"v_add_u32 v{VA + 1}, s33, v{VBO}")
        adv()

    def k_read(ks, ring=6):
        L.issue(("k", ks), f"ds_read_b128 {vr(KF + 4 * (ks % ring), 4)}, v{KA + (ks & 3)} offset:{128 * (ks >> 2)}")

    def v_read(n):
        T, j = divmod(n, 2)
        for rd in range(2):
            off = (16 * j + 8 * rd) * 384 + 64 * T
            L.issue(("v", n), f"ds_read_b64_tr_b16 {vr(VF + 4 * (n % 6) + 2 * rd, 2)}, v{VA + (T & 1)} offset:{off}")

    def sm1_ops(S, tag):
        ops = []
        ops.append(f"v_max3_f32 v{T0}, v{S}, v{S + 1}, v{VM}")
        for k in range(2, 16, 2):
            ops.append(f"v_max3_f32 v{T0}, v{S + k}, v{S + k + 1}, v{T0}")
        ops.append(f"v_mov_b32 v{T1}, v{T0}")
        ops.append("s_nop 1")
        ops.append(f"v_permlane32_swap_b32 v{T0}, v{T1}")
        ops.append(f"v_max_f32 v{T0}, v{T0}, v{T1}")
        ops.append(f"v_sub_f32 v{T1}, v{T0}, v{VM}")
        ops.append(f"v_cmp_lt_f32 vcc, s46, v{T1}")
        ops.append(f"s_cbranch_vccnz A_rare1_{tag}")
        ops.append(f"A_back1_{tag}:")
        for k in range(16):
            ops.append(f"v_fma_f32 v{S + k}, v{S + k}, s32, -v{VMC}")
        return ops

    def sm2_ops(S):
        ops = []
        for k in range(16):
            ops.append(f"v_exp_f32 v{S + k}, v{S + k}")
        for e in range(8):
            ops.append(f"v_cvt_pk_bf16_f32 v{P + e}, v{S + 2 * e}, v{S + 2 * e + 1}")
        for k in range(0, 16, 2):
            ops.append(f"v_add_f32 v{S + k}, v{S + k}, v{S + k + 1}")
        for k in range(0, 16, 4):
            ops.append(f"v_add_f32 v{S + k}, v{S + k}, v{S + k + 2}")
        ops.append(f"v_add_f32 v{S}, v{S}, v{S + 4}")
        ops.append(f"v_add_f32 v{S + 8}, v{S + 8}, v{S + 12}")
        ops.append(f"v_add_f32 v{S}, v{S}, v{S + 8}")
        ops.append(f"v_add_f32 v{VL}, v{VL}, v{S}")
        return ops

    rare = []

    def emit(op):
        if op.endswith(":"):
            a.label(op[:-1])
        else:
            a(op)

    def take(lst, n):
        for _ in range(min(n, len(lst))):
            emit(lst.pop(0))

    def rare1(tag):
        rare.append(f"A_rare1_{tag}:")
        rare.append(f"    v_sub_f32 v{VAL}, v{VM}, v{T0}")
        rare.append(f"    v_mul_f32 v{VAL}, s32, v{VAL}")
        rare.append(f"    v_exp_f32 v{VAL}, v{VAL}")
        rare.append(f"    v_mov_b32 v{VM}, v{T0}")
        rare.append(f"    v_mul_f32 v{VMC}, s32, v{T0}")
        rare.append(f"    v_mul_f32 v{VL}, v{VL}, v{VAL}")
        rare.append(f"    s_mov_b32 s47, 1")
        rare.append(f"    s_branch A_back1_{tag}")

    def rare2(tag):
        a("s_cmp_lg_u32 s47, 0")
        a(f"s_cbranch_scc1 A_rare2_{tag}")
        a.label(f"A_back2_{tag}")
        rare.append(f"A_rare2_{tag}:")
        rare.append("    s_nop 15")
        for i in range(96):
            rare.append(f"    v_mul_f32 v{O + i}, v{O + i}, v{VAL}")
        rare.append("    s_mov_b32 s47, 0")
        rare.append(f"    s_branch A_back2_{tag}")

    EXPB = 3

    def cost(op):
        if op.endswith(":"):
            return 0
        if op.startswith("v_exp") or op.startswith("s_nop 1"):
            return 8
        return 4

    def fill(lst, budget):
        while lst and cost(lst[0]) <= budget:
            budget -= cost(lst[0])
            emit(lst.pop(0))

    GB = 24

    def iteration(cur, nxt, tag, qk=True, knext=True):
        rare2(tag)
        allf = sm2_ops(cur)[EXPB:]
        f = allf[:len(allf) - 16]
        sums = allf[len(allf) - 16:]
        for ks in range(12):
            b = GB
            if qk:
                if ks % 2 == 0:
                    L.need(("k", ks + 1))
                    b -= 4
                c = "0" if ks == 0 else vr(nxt, 16)
                a(f"v_mfma_f32_32x32x16_bf16 {vr(nxt, 16)}, {vr(KF + 4 * (ks % 6), 4)}, {vr(QF + 4 * ks, 4)}, {c}")
                if ks % 2 == 1 and ks + 5 < 12:
                    k_read(ks + 5)
                    k_read(ks + 6)
                    b -= 8
            if ks == 6:
                v_addr()
                b -= 20
            if ks == 8:
                L.drain()
                a("s_barrier")
                b -= 8
            if ks in (8, 9, 10):
                v_read(2 * (ks - 8))
                v_read(2 * (ks - 8) + 1)
                b -= 16
            fill(f, max(b, 8) if ks < 11 else 999)
        g = []
        if qk:
            g = sm1_ops(nxt, tag) + sm2_ops(nxt)[:EXPB]
            rare1(tag)
        for n in range(12):
            T, j = divmod(n, 2)
            b = GB
            if n % 2 == 0:
                L.need(("v", n + 1))
                b -= 4
            a(f"v_mfma_f32_32x32x16_bf16 {vr(O + 16 * T, 16)}, {vr(VF + 4 * (n % 6), 4)}, {vr(P + 4 * j, 4)}, {vr(O + 16 * T, 16)}")
            if n % 2 == 1 and n + 5 < 12:
                v_read(n + 5)
                v_read(n + 6)
                b -= 16
            if knext:
                if n == 6:
                    k_addr()
                    b -= 28
                if n == 8:
                    L.drain()
                    a("s_barrier")
                    b -= 8
                if n in (8, 9, 10):
                    k_read(2 * (n - 8))
                    k_read(2 * (n - 8) + 1)
                    b -= 8
            if n < 3:
                fill(sums, 24 if n < 2 else 999)
            else:
                fill(g, max(b + 8, 8) if n < 11 else 999)

    if "nocompute" in FLAGS:
        a("s_mov_b32 s34, 0")
        a.label("A_nc")
        a("s_barrier")
        a("s_add_u32 s34, s34, 1")
        a("s_cmp_lt_u32 s34, 128")
        a("s_cbranch_scc1 A_nc")
        a("s_branch A_fin")
    a.label("A_item")
    a.novalu = "novalu" in FLAGS
    a.nolds = "nolds" in FLAGS
    a.nomfma = "nomfma" in FLAGS
    for i in range(96):
        a(f"v_mov_b32 v{O + i}, 0")
    a(f"v_mov_b32 v{VM}, 0xff800000")
    a(f"v_mov_b32 v{VL}, 0")
    a("s_mov_b32 s47, 0")
    k_addr()
    L.drain()
    a("s_barrier")
    for ks in range(12):
        k_read(ks, ring=12)
    for ks in range(12):
        L.need(("k", ks))
        c = "0" if ks == 0 else vr(SA, 16)
        a(f"v_mfma_f32_32x32x16_bf16 {vr(SA, 16)}, {vr(KF + 4 * ks, 4)}, {vr(QF + 4 * ks, 4)}, {c}")
    k_addr()
    a("s_barrier")
    for ks in range(6):
        k_read(ks)
    a("s_nop 4")
    g = sm1_ops(SA, "p") + sm2_ops(SA)[:EXPB]
    rare1("p")
    take(g, 99)
    a("s_mov_b32 s34, 0")
    q0 = list(L.q)
    a.label("A_loop")
    iteration(SA, SB, "e")
    iteration(SB, SA, "o")
    assert L.q == q0, (L.q, q0)
    a("s_add_u32 s34, s34, 1")
    a("s_cmp_lt_u32 s34, 15")
    a("s_cbranch_scc1 A_loop")
    iteration(SA, SB, "e2", knext=False)
    iteration(SB, SA, "o2", qk=False, knext=False)
    for ks in range(12):
        L.issue(("q",), f"ds_read_b128 {vr(QF + 4 * ks, 4)}, v{QRD} offset:{ks * 1024}")
    a(f"v_mov_b32 v{T1}, v{VL}")
    a("s_nop 1")
    a(f"v_permlane32_swap_b32 v{VL}, v{T1}")
    a(f"v_add_f32 v{VL}, v{VL}, v{T1}")
    a(f"v_rcp_f32 v{T1}, v{VL}")
    a("s_mul_i32 s7, s4, 3")
    a("s_add_u32 s7, s7, s3")
    a("s_mul_i32 s7, s7, 384")
    a("s_mul_i32 s35, s5, 12")
    a("s_add_u32 s7, s7, s35")
    a("s_lshl_b32 s7, s7, 10")
    a(f"v_lshlrev_b32 v{T2}, 4, v0")
    a("s_nop 7")
    for T in range(6):
        for g in range(4):
            for e in range(2):
                r = O + 16 * T + 4 * g + 2 * e
                a(f"v_mul_f32 v{r}, v{r}, v{T1}")
                a(f"v_mul_f32 v{r + 1}, v{r + 1}, v{T1}")
        for g in range(4):
            for e in range(2):
                r = O + 16 * T + 4 * g + 2 * e
                a(f"v_cvt_pk_bf16_f32 v{KF + 8 * T + 2 * g + e}, v{r}, v{r + 1}")
        a("s_nop 1")
        for g in (0, 2):
            d = KF + 8 * T + 2 * g
            a(f"v_permlane32_swap_b32 v{d}, v{d + 2}")
            a(f"v_permlane32_swap_b32 v{d + 1}, v{d + 3}")
        for g in (0, 2):
            d = KF + 8 * T + 2 * g
            a(f"buffer_store_dwordx4 {vr(d, 4)}, v{T2}, s[24:27], s7 offen offset:{512 * g}{OST}")
        a("s_add_u32 s7, s7, 2048")
    a("s_add_u32 s4, s4, 8")
    a("s_add_u32 s49, s49, 1")
    a("s_cmp_lt_u32 s49, 2")
    a("s_cbranch_scc0 A_fin")
    a("s_waitcnt vmcnt(0)")
    a("s_branch A_item")
    a.label("A_fin")
    a.novalu = a.nolds = a.nomfma = False
    if "stamp" in FLAGS:
        a("s_memrealtime s[54:55]")
        a("s_memtime s[60:61]")
        a("s_waitcnt lgkmcnt(0)")
        a("s_sub_u32 s56, s60, s58")
        a("s_mov_b32 s26, 0x7fffffff")
        a("v_mov_b32 v4, s50")
        a("v_mov_b32 v5, s52")
        a("v_mov_b32 v6, s54")
        a("v_mov_b32 v7, s56")
        a("s_lshl_b32 s7, s2, 2")
        a("s_add_u32 s7, s7, s3")
        a("s_lshl_b32 s7, s7, 4")
        a("s_add_u32 s7, s7, 0x4000000")
        a("v_mov_b32 v8, 0")
        a("buffer_store_dwordx4 v[4:7], v8, s[24:27], s7 offen")
    a("s_endpgm")
    a.l.extend(rare)

    seq = []
    for r in range(2):
        seq.append(('K', r, 0))
        for i in range(31):
            seq.append(('K', r, i + 1))
            seq.append(('V', r, i))
        seq.append(('V', r, 31))
    N = len(seq)
    for who in "KV":
        a.label(f"A_load{who}")
        a("s_setprio 3")
        OF = 32
        for j in range(12):
            a(f"v_add_u32 v25, {64 * j}, v0")
            div24(a, 26, 27, 25, 28)
            if who == "K":
                a("v_bfe_u32 v28, v26, 1, 3")
            else:
                a("v_bfe_u32 v28, v26, 1, 1")
                a("v_lshlrev_b32 v28, 2, v28")
            a("v_xor_b32 v29, v27, v28")
            a("v_mul_u32_u24 v26, 384, v26")
            a(f"v_lshl_add_u32 v{OF + j}, v29, 4, v26")
        rs = "s[8:11]" if who == "K" else "s[12:15]"

        def issue(u):
            if u[2] == 0 and u[1] == 1:
                a(f"s_add_u32 s29, s6, {8 * 32 * 393216}")
            if "noload" not in FLAGS:
                for j in range(12):
                    a(f"s_add_u32 m0, s31, {j * 1024}")
                    a("s_nop 0")
                    a(f"buffer_load_dwordx4 v{OF + j}, {rs}, s29 offen {NT}lds")
            a("s_add_u32 s29, s29, 12288")

        def nextslot():
            a(f"s_add_u32 s31, s31, {UNIT}")
            a(f"s_cmp_eq_u32 s31, {RINGB}")
            a("s_cselect_b32 s31, 0, s31")

        if "coop" in FLAGS:
            a("s_lshr_b32 s7, s2, 3")
            if who == "K":
                a("s_and_b32 s35, s2, 7")
                a("s_mul_i32 s35, s35, 1536")
                a(f"s_mul_i32 s7, s7, {20 * 12288}")
                a("s_add_u32 s7, s7, s35")
                for j in range(4):
                    a(f"v_add_u32 v25, {64 * j}, v0")
                    if j == 3:
                        a("v_min_u32 v25, 239, v25")
                    a("v_mul_u32_u24 v26, 5462, v25")
                    a("v_lshrrev_b32 v26, 16, v26")
                    a("v_mul_u32_u24 v27, 12, v26")
                    a("v_sub_u32 v27, v25, v27")
                    a("v_mul_u32_u24 v26, 12288, v26")
                    a("v_lshl_add_u32 v26, v27, 7, v26")
                    a("buffer_load_dword v31, v26, s[16:19], s7 offen")
            else:
                a("s_mul_i32 s7, s7, 61440")
                a("v_lshlrev_b32 v26, 7, v0")
                for j in range(8):
                    if j == 7:
                        a("v_min_u32 v26, 61312, v26")
                    a("buffer_load_dword v31, v26, s[20:23], s7 offen")
                    a("v_add_u32 v26, 8192, v26")
        a("s_mov_b32 s29, s6")
        a("s_mov_b32 s31, 0")
        nini = 0
        for n in range(KV0):
            if seq[n][0] == who:
                issue(seq[n])
                nini += 12
            nextslot()
        if "coop" in FLAGS:
            a(f"s_waitcnt vmcnt({0 if 'noload' in FLAGS else nini})")
            a("s_barrier")
        PF = int(os.environ.get("PF", "0"))
        if PF:
            a("v_lshlrev_b32 v26, 7, v0")
            a("s_mov_b32 s35, s29")
            for i in range(PF * 96 // 64):
                a(f"buffer_load_dword v31, v26, {rs}, s35 offen")
                a("s_add_u32 s35, s35, 8192")
        for i in range(21):
            a("s_barrier")
        for n in range(KV0, RING - 1):
            if seq[n][0] == who:
                issue(seq[n])
            nextslot()
        ev = []
        for n in range(N):
            upto = min(N - 1, n + RING - 2)
            w = None
            if seq[n][0] == who:
                w = sum(1 for m in range(n + 1, upto + 1) if seq[m][0] == who) * 12
                assert w <= 63
            m = n + RING - 1
            iss = seq[m] if (m < N and seq[m][0] == who) else None
            key = (w, None if iss is None else (iss[2] == 0 and iss[1] == 1))
            ev.append((key, iss))

        def step(e):
            (w, _), iss = e
            if w is not None:
                a(f"s_waitcnt vmcnt({w})")
            a("s_barrier")
            if iss is not None:
                issue(iss)
            nextslot()

        n = 0
        while n < N:
            k = n
            while k + 2 < N and ev[k + 2][0] == ev[k][0]:
                k += 1
            reps = (k + 2 - n) // 2
            if reps >= 4:
                lab = a.newlabel(f"A_l{who}")
                a("s_mov_b32 s34, 0")
                a.label(lab)
                step(ev[n])
                step(ev[n + 1])
                a("s_add_u32 s34, s34, 1")
                a(f"s_cmp_lt_u32 s34, {reps}")
                a(f"s_cbranch_scc1 {lab}")
                n += 2 * reps
            else:
                step(ev[n])
                n += 1
        a("s_endpgm")
    a.label("A_done")
    a("s_endpgm")


NCH = 8
OSTG = 16384
LDS2 = NCH * OSTG
POFF = 0x3000000
P_BYTES = 60 * 16 * 16384


def gen_oproj(a):
    K = "oproj_kernel"
    a.l.append(f".globl {K}\n.p2align 8\n.type {K},@function\n{K}:")
    a("s_cmp_ge_u32 s2, 240")
    a("s_cbranch_scc1 B_done")
    a("s_load_dwordx4 s[36:39], s[0:1], 32")
    a("s_load_dwordx4 s[40:43], s[0:1], 48")
    a("v_lshrrev_b32 v1, 6, v0")
    a("v_and_b32 v0, 63, v0")
    a("s_and_b32 s4, s2, 7")
    a("s_lshr_b32 s5, s2, 3")
    a("v_readfirstlane_b32 s3, v1")
    a("s_lshr_b32 s31, s4, 1")
    a("s_and_b32 s4, s4, 1")
    a("s_mul_i32 s4, s4, 30")
    a("s_add_u32 s5, s5, s4")
    a("s_mul_i32 s6, s5, 52")
    a("s_lshr_b32 s6, s6, 8")
    a("s_mul_i32 s7, s6, 5")
    a("s_sub_u32 s7, s5, s7")
    a("s_waitcnt lgkmcnt(0)")
    srd(a, (8, 36), WO_BYTES)
    srd(a, (12, 42), O_BYTES)
    srd(a, (16, 38), OUT_BYTES)
    a(f"s_add_u32 s20, s42, {POFF}")
    a("s_addc_u32 s21, s43, 0")
    a("s_and_b32 s21, s21, 0xffff")
    a(f"s_mov_b32 s22, {P_BYTES}")
    a("s_mov_b32 s23, 0x00020000")
    srd(a, (24, 40), 256)
    a("s_cmp_ge_u32 s3, 4")
    a("s_cbranch_scc1 B_load")
    ACC, AF, BF, PB, PB2 = 80, 16, 48, 144, 16
    RA, RB = 8, 12
    L = LdsQ(a)
    a("s_and_b32 s28, s3, 1")
    a("s_lshr_b32 s29, s3, 1")
    a("v_and_b32 v1, 31, v0")
    a("v_lshrrev_b32 v2, 5, v0")
    a("v_and_b32 v3, 15, v0")
    a("v_bfe_u32 v4, v0, 4, 1")
    a("v_lshrrev_b32 v5, 2, v3")
    a("v_and_b32 v6, 3, v3")
    a("v_lshl_add_u32 v25, v2, 3, v5")
    a("v_lshlrev_b32 v25, 8, v25")
    a("v_lshrrev_b32 v26, 1, v6")
    a("v_lshl_add_u32 v26, v4, 1, v26")
    a("v_lshl_add_u32 v25, v26, 4, v25")
    a("v_and_b32 v26, 1, v6")
    a("v_lshl_add_u32 v25, v26, 3, v25")
    a("s_lshl_b32 s30, s28, 1")
    for T in range(2):
        a(f"s_add_u32 s33, s30, {T}")
        a("v_xor_b32 v26, s33, v5")
        a(f"v_lshl_add_u32 v{RA + T}, v26, 6, v25")
    a("s_lshl_b32 s30, s29, 12")
    a("s_add_u32 s30, s30, 8192")
    a(f"v_lshl_add_u32 v{RB}, v0, 4, s30")
    a(f"v_add_u32 v{RA + 2}, {4 * OSTG}, v{RA}")
    a(f"v_add_u32 v{RA + 3}, {4 * OSTG}, v{RA + 1}")
    a(f"v_add_u32 v{RB + 1}, {4 * OSTG}, v{RB}")
    for i in range(64):
        a(f"v_mov_b32 v{ACC + i}, 0")

    def a_read(slot, buf, k2, T):
        hi = slot >= 4
        for rd in range(2):
            off = (slot % 4) * OSTG + (16 * k2 + 4 * rd) * 256
            L.issue(("a",), f"ds_read_b64_tr_b16 {vr(AF + buf * 16 + (k2 * 2 + T) * 4 + 2 * rd, 2)}, v{RA + T + 2 * hi} offset:{off}")

    def b_read(slot, buf, k2, tt):
        hi = slot >= 4
        off = (slot % 4) * OSTG + (tt * 2 + k2) * 1024
        L.issue(("a",), f"ds_read_b128 {vr(BF + buf * 16 + (k2 * 2 + tt) * 4, 4)}, v{RB + hi} offset:{off}")

    a("s_barrier")
    for k2 in range(2):
        for T in range(2):
            a_read(0, 0, k2, T)
            b_read(0, 0, k2, T)
    a("s_mov_b32 s34, 0")
    a.label("B_loop")
    for s_ in range(NCH):
        buf = s_ & 1
        L.drain()
        a("s_barrier")
        for k2 in range(2):
            for T in range(2):
                for tt in range(2):
                    acc = ACC + (T * 2 + tt) * 16
                    a(f"v_mfma_f32_32x32x16_bf16 {vr(acc, 16)}, {vr(AF + buf * 16 + (k2 * 2 + T) * 4, 4)}, {vr(BF + buf * 16 + (k2 * 2 + tt) * 4, 4)}, {vr(acc, 16)}")
                    if tt == 0:
                        a_read((s_ + 1) % NCH, buf ^ 1, k2, T)
                    else:
                        b_read((s_ + 1) % NCH, buf ^ 1, k2, T)
    a("s_add_u32 s34, s34, 1")
    a(f"s_cmp_lt_u32 s34, {48 // NCH}")
    a("s_cbranch_scc1 B_loop")
    a("s_lshl_b32 s30, s5, 4")
    a("s_lshl_b32 s33, s3, 2")
    a("s_add_u32 s30, s30, s33")
    a("v_lshlrev_b32 v9, 4, v0")
    a("s_nop 7")
    a("s_cmp_eq_u32 s3, s31")
    a("s_cbranch_scc1 B_own")
    a("s_add_u32 s33, s30, s31")
    a("s_lshl_b32 s33, s33, 14")
    for i in range(16):
        if i and i % 4 == 0:
            a("s_add_u32 s33, s33, 4096")
        a(f"buffer_store_dwordx4 {vr(ACC + 4 * i, 4)}, v9, s[20:23], s33 offen offset:{(i % 4) * 1024} sc1")
    a("s_waitcnt vmcnt(0)")
    a("s_barrier")
    a("s_endpgm")
    a.label("B_own")
    a("s_barrier")
    a("s_lshl_b32 s33, s5, 2")
    a("v_mov_b32 v10, s33")
    a("v_mov_b32 v11, 1")
    a("s_mov_b64 exec, 1")
    a("buffer_atomic_add v11, v10, s[24:27], 0 offen")
    a.label("B_poll")
    a("buffer_load_dword v11, v10, s[24:27], 0 offen sc1")
    a("s_waitcnt vmcnt(0)")
    a("v_readfirstlane_b32 s35, v11")
    a("s_cmp_ge_u32 s35, 4")
    a("s_cbranch_scc1 B_go")
    a("s_sleep 2")
    a("s_branch B_poll")
    a.label("B_go")
    a("s_mov_b64 exec, -1")
    for j in range(1, 4):
        a(f"s_add_u32 s33, s31, {j}")
        a("s_and_b32 s33, s33, 3")
        a("s_add_u32 s33, s33, s30")
        a("s_lshl_b32 s33, s33, 14")
        for i in range(16):
            if i and i % 4 == 0:
                a("s_add_u32 s33, s33, 4096")
            a(f"buffer_load_dwordx4 {vr((PB2 if j == 2 else PB) + 4 * i, 4)}, v9, s[20:23], s33 offen offset:{(i % 4) * 1024} sc1")
        if j >= 2:
            src = PB if j == 2 else PB2
            a("s_waitcnt vmcnt(16)")
            for i in range(64):
                a(f"v_add_f32 v{ACC + i}, v{ACC + i}, v{src + i}")
    a("s_waitcnt vmcnt(0)")
    for i in range(64):
        a(f"v_add_f32 v{ACC + i}, v{ACC + i}, v{PB + i}")
    for i in range(32):
        a(f"v_cvt_pk_bf16_f32 v{PB + i}, v{ACC + 2 * i}, v{ACC + 2 * i + 1}")
    a("s_lshl_b32 s33, s6, 7")
    a("s_lshl_b32 s35, s29, 6")
    a("s_add_u32 s33, s33, s35")
    a("v_add_u32 v9, s33, v1")
    a("v_mul_u32_u24 v9, 1280, v9")
    a("v_lshl_add_u32 v9, v2, 4, v9")
    a(f"v_add_u32 v10, {32 * 1280}, v9")
    a("s_lshl_b32 s33, s7, 8")
    a("s_lshl_b32 s35, s28, 7")
    a("s_add_u32 s33, s33, s35")
    for T in range(2):
        for tt in range(2):
            for g in (0, 2):
                d = PB + (T * 2 + tt) * 8 + 2 * g
                a(f"v_permlane32_swap_b32 v{d}, v{d + 2}")
                a(f"v_permlane32_swap_b32 v{d + 1}, v{d + 3}")
    for T in range(2):
        for tt in range(2):
            for g in (0, 2):
                d = PB + (T * 2 + tt) * 8 + 2 * g
                a(f"buffer_store_dwordx4 {vr(d, 4)}, v{9 + tt}, s[16:19], s33 offen offset:{64 * T + 16 * g}")
    a("s_endpgm")
    a.label("B_load")
    OFF = 8
    a("s_cmp_ge_u32 s3, 6")
    a("s_cbranch_scc1 B_loado")
    a("s_sub_u32 s28, s3, 4")
    a("s_lshl_b32 s29, s28, 8")
    for jj in range(4):
        a(f"v_add_u32 v25, s29, v0")
        if jj:
            a(f"v_add_u32 v25, {64 * jj}, v25")
        a("v_lshrrev_b32 v26, 4, v25")
        a("v_and_b32 v27, 15, v25")
        a("v_and_b32 v28, 3, v26")
        a("v_lshlrev_b32 v28, 2, v28")
        a("v_xor_b32 v27, v27, v28")
        a("v_mul_u32_u24 v26, 1280, v26")
        a(f"v_lshl_add_u32 v{OFF + jj}, v27, 4, v26")
    a("s_mul_i32 s33, s31, 1966080")
    a("s_lshl_b32 s30, s7, 8")
    a("s_add_u32 s33, s33, s30")
    a("s_mov_b32 s35, 40960")
    a("s_lshl_b32 s30, s28, 12")
    for i in range(4):
        a(f"s_mov_b32 s{44 + i}, s{8 + i}")
    a("s_branch B_lgo")
    a.label("B_loado")
    a("s_sub_u32 s28, s3, 6")
    a("s_lshl_b32 s29, s6, 2")
    a("s_lshl_b32 s30, s28, 1")
    a("s_add_u32 s29, s29, s30")
    a(f"s_mul_i32 s29, s29, {384 * 1024}")
    a(f"v_lshl_add_u32 v{OFF}, v0, 4, s29")
    a(f"v_add_u32 v{OFF + 1}, 1024, v{OFF}")
    a(f"v_add_u32 v{OFF + 2}, {384 * 1024}, v{OFF}")
    a(f"v_add_u32 v{OFF + 3}, {384 * 1024 + 1024}, v{OFF}")
    a("s_mul_i32 s33, s31, 98304")
    a("s_mov_b32 s35, 2048")
    a("s_lshl_b32 s30, s28, 12")
    a("s_add_u32 s30, s30, 8192")
    for i in range(4):
        a(f"s_mov_b32 s{44 + i}, s{12 + i}")
    a.label("B_lgo")

    def issue(slot):
        for jj in range(4):
            a(f"s_add_u32 m0, s30, {slot * OSTG + jj * 1024}")
            a("s_nop 0")
            a(f"buffer_load_dwordx4 v{OFF + jj}, s[44:47], s33 offen lds")
        a("s_add_u32 s33, s33, s35")

    for s_ in range(NCH):
        issue(s_)
    a(f"s_waitcnt vmcnt({4 * (NCH - 1)})")
    a("s_barrier")
    a("s_mov_b32 s34, 0")
    a.label("B_lloop")
    for s_ in range(NCH):
        a(f"s_waitcnt vmcnt({4 * (NCH - 2)})")
        a("s_barrier")
        issue(s_)
    a("s_add_u32 s34, s34, 1")
    a(f"s_cmp_lt_u32 s34, {48 // NCH}")
    a("s_cbranch_scc1 B_lloop")
    a.label("B_done")
    a("s_endpgm")


def descriptor(name, vgpr):
    return f""".p2align 6
.amdhsa_kernel {name}
  .amdhsa_next_free_vgpr {vgpr}
  .amdhsa_next_free_sgpr 64
  .amdhsa_accum_offset {vgpr}
  .amdhsa_group_segment_fixed_size 0
  .amdhsa_kernarg_size 64
  .amdhsa_user_sgpr_count 2
  .amdhsa_user_sgpr_kernarg_segment_ptr 1
  .amdhsa_system_sgpr_workgroup_id_x 1
.end_amdhsa_kernel
"""


def main():
    ref = open(f"cdna_kernels/{NAME}.s.ref").read().splitlines()
    head = [l for l in ref if l.startswith(";") and "@launch" not in l and "Override" not in l and "grid=ceil" not in l]
    a = Asm()
    out = "\n".join(head) + "\n"
    out += f"; @launch kernel=attn_kernel grid=(256,1,1) block=(512,1,1) lds={LDS1}\n"
    out += f"; @launch kernel=oproj_kernel grid=(240,1,1) block=(512,1,1) lds={LDS2}\n"
    out += '.amdgcn_target "amdgcn-amd-amdhsa--gfx950"\n.text\n'
    gen_attn(a)
    gen_oproj(a)
    out += a.text()
    out += '.section .rodata,"a"\n'
    out += descriptor("attn_kernel", 256)
    out += descriptor("oproj_kernel", 256)
    dst = sys.argv[1] if len(sys.argv) > 1 else f"cdna_kernels/{NAME}.s"
    open(dst, "w").write(out)


if __name__ == "__main__":
    main()
```

```python
import math, sys, os
FLAGS = os.environ.get("GENFLAGS", "").split(",")

NAME = "standalone__mha_block_cached__near_ridge"
B, SQ, D, H, SK, DH = 16, 96, 640, 32, 1024, 192
KV_BYTES = B * H * SK * DH * 2
X_BYTES = B * SQ * D * 2
WQ_BYTES = D * H * DH * 2
WO_BYTES = H * DH * D * 2
OUT_BYTES = B * SQ * D * 2
O_BYTES = B * SQ * H * DH * 2
UNIT = 12288
NSLOT = 6
LDS1 = UNIT * NSLOT
WQF = os.environ.get("WQF", "")
if WQF: WQF += " "
OST = os.environ.get("OST", "sc1")
if OST: OST = " " + OST
NT = "nt " if "nt" in FLAGS else ""
CSCALE = (DH ** -0.5) * math.log2(math.e)


class Asm:
    def __init__(self):
        self.l = []
        self.n = 0

    def __call__(self, s):
        if getattr(self, "nobar", False) and s == "s_barrier":
            return
        if getattr(self, "novalu", False) and (s.startswith("v_exp") or s.startswith("v_fma") or s.startswith("v_add_f32") or s.startswith("v_max3") or s.startswith("v_cvt")):
            return
        if getattr(self, "nolds", False) and s.startswith("ds_read"):
            return
        if getattr(self, "nomfma", False) and s.startswith("v_mfma"):
            return
        self.l.append("    " + s)

    def label(self, s):
        self.l.append(s + ":")

    def c(self, s):
        self.l.append("    ; " + s)

    def newlabel(self, p="L"):
        self.n += 1
        return f"{p}_{self.n}"

    def text(self):
        return "\n".join(self.l) + "\n"


def f32hex(x):
    import struct
    return "0x%08x" % struct.unpack("<I", struct.pack("<f", x))[0]


def vr(a, n):
    return f"v[{a}:{a + n - 1}]"


def srd(a, base, nbytes):
    a(f"s_mov_b32 s{base[0]}, s{base[1]}")
    a(f"s_and_b32 s{base[0] + 1}, s{base[1] + 1}, 0xffff")
    a(f"s_mov_b32 s{base[0] + 2}, {nbytes}")
    a(f"s_mov_b32 s{base[0] + 3}, 0x00020000")


def div24(a, vdst_q, vdst_r, vsrc, vt):
    a(f"v_mul_u32_u24 v{vdst_q}, 2731, v{vsrc}")
    a(f"v_lshrrev_b32 v{vdst_q}, 16, v{vdst_q}")
    a(f"v_mul_u32_u24 v{vt}, 24, v{vdst_q}")
    a(f"v_sub_u32 v{vdst_r}, v{vsrc}, v{vt}")


class LdsQ:
    def __init__(self, a):
        self.a = a
        self.q = []

    def issue(self, tag, text):
        self.a(text)
        self.q.append(tag)

    def need(self, tag):
        idx = max((i for i, t in enumerate(self.q) if t == tag), default=-1)
        if idx < 0:
            return
        n = len(self.q) - 1 - idx
        self.a(f"s_waitcnt lgkmcnt({min(n, 15)})")
        self.q = self.q[idx + 1:] if n <= 15 else self.q[len(self.q) - 15:]

    def drain(self):
        self.a("s_waitcnt lgkmcnt(0)")
        self.q = []


RING = 10
RINGB = RING * UNIT
LDS1 = RINGB + 3 * UNIT
R1 = 8
KV0 = 5


def gen_attn(a):
    K = "attn_kernel"
    a.l.append(f".globl {K}\n.p2align 8\n.type {K},@function\n{K}:")
    a("s_cmp_ge_u32 s2, 256")
    a("s_cbranch_scc1 A_done")
    a("s_load_dwordx8 s[36:43], s[0:1], 0")
    a("s_load_dwordx2 s[44:45], s[0:1], 56")
    a("v_lshrrev_b32 v1, 6, v0")
    a("v_and_b32 v0, 63, v0")
    a("s_lshr_b32 s4, s2, 5")
    a("s_and_b32 s5, s2, 7")
    a("s_lshl_b32 s5, s5, 2")
    a("s_bfe_u32 s7, s2, 0x20003")
    a("s_add_u32 s5, s5, s7")
    a("v_readfirstlane_b32 s3, v1")
    a("s_lshl_b32 s6, s4, 5")
    a("s_add_u32 s6, s6, s5")
    a("s_mul_i32 s6, s6, 393216")
    a("s_waitcnt lgkmcnt(0)")
    srd(a, (8, 38), KV_BYTES)
    srd(a, (12, 40), KV_BYTES)
    srd(a, (16, 42), WQ_BYTES)
    srd(a, (20, 36), X_BYTES)
    srd(a, (24, 44), O_BYTES)
    if "stamp" in FLAGS:
        a("s_memrealtime s[50:51]")
    a("s_cmp_eq_u32 s3, 3")
    a("s_cbranch_scc1 A_loadK")
    a("s_cmp_eq_u32 s3, 7")
    a("s_cbranch_scc1 A_loadV")

    KB, VBE, VBO = 4, 8, 9
    KA, VA = 10, 14
    VM, VL, VMC, VAL = 16, 17, 18, 19
    T0, T1, T2, T3 = 20, 21, 22, 23
    QF, O, SA, SB, P, KF, VF = 24, 72, 168, 184, 200, 208, 232
    QRD = 1
    WOFF, WBE, WBO = 2, 11, 12
    AF = KF
    L = LdsQ(a)

    XW, XB, BFR = 15, 20, SA
    a("s_and_b32 s9, s3, 3")
    a("s_lshr_b32 s10, s3, 2")
    a("s_mul_i32 s11, s10, 3")
    a("s_add_u32 s11, s11, s9")
    q_, hf_, lp_, g1_, rr_, cc_, t5, t6, t7, t8 = range(KF, KF + 10)
    a("s_lshl_b32 s7, s11, 7")
    for jj in range(2):
        a(f"v_add_u32 v{t5}, s7, v0")
        if jj:
            a(f"v_add_u32 v{t5}, 64, v{t5}")
        div24(a, t6, t7, t5, t8)
        a(f"v_bfe_u32 v{t8}, v{t6}, 1, 1")
        a(f"v_lshlrev_b32 v{t8}, 2, v{t8}")
        a(f"v_xor_b32 v{t7}, v{t7}, v{t8}")
        a(f"v_mul_u32_u24 v{t6}, 12288, v{t6}")
        a(f"v_lshl_add_u32 v{WOFF + jj}, v{t7}, 4, v{t6}")
    for jj in range(4):
        a(f"v_add_u32 v{t5}, {64 * jj}, v0")
        a(f"v_lshrrev_b32 v{t6}, 3, v{t5}")
        a(f"v_and_b32 v{t7}, 7, v{t5}")
        a(f"v_bfe_u32 v{t8}, v{t6}, 1, 3")
        a(f"v_xor_b32 v{t7}, v{t7}, v{t8}")
        a(f"v_mul_u32_u24 v{t6}, 1280, v{t6}")
        a(f"v_lshl_add_u32 v{XW + jj}, v{t7}, 4, v{t6}")
    a("s_mul_i32 s29, s5, 384")
    a("s_lshl_b32 s7, s10, 3")
    a("s_add_u32 s7, s7, s4")
    a("s_mul_i32 s30, s7, 122880")
    a("s_mul_i32 s7, s9, 40960")
    a("s_add_u32 s30, s30, s7")
    a("s_lshl_b32 s28, s11, 11")
    a("s_lshl_b32 s48, s11, 12")

    WR = 4

    def wslot(t):
        i = t % WR
        return RINGB + i * UNIT if i < 3 else 9 * UNIT

    XRN = (9 - KV0) // 2

    def xslot(u):
        return (KV0 + 2 * (u % XRN)) * UNIT

    def w_issue(t):
        a(f"s_add_u32 s31, s29, {t * 32 * 12288}")
        for jj in range(2):
            a(f"s_add_u32 m0, s28, {wslot(t) + jj * 1024}")
            a("s_nop 0")
            a(f"buffer_load_dwordx4 v{WOFF + jj}, s[16:19], s31 offen lds")

    def x_issue(u):
        a(f"s_add_u32 s31, s30, {u * 128}")
        for jj in range(4):
            a(f"s_add_u32 m0, s48, {xslot(u) + jj * 1024}")
            a("s_nop 0")
            a(f"buffer_load_dwordx4 v{XW + jj}, s[20:23], s31 offen lds")

    vq = []

    def vissue(tag):
        if tag[0] == "w":
            w_issue(tag[1]); vq.append((tag, 2))
        else:
            x_issue(tag[1]); vq.append((tag, 4))

    def vneed(tags):
        idx = max((i for i, (t_, _) in enumerate(vq) if t_ in tags), default=-1)
        if idx < 0:
            return
        n = sum(c for _, c in vq[idx + 1:])
        a(f"s_waitcnt vmcnt({n})")
        del vq[:idx + 1]

    vissue(("w", 0)); vissue(("x", 0)); vissue(("w", 1)); vissue(("w", 2)); vissue(("x", 1)); vissue(("w", 3))
    for u in range(2, XRN):
        vissue(("x", u))
    a(f"v_and_b32 v{q_}, 31, v0")
    a(f"v_lshrrev_b32 v{hf_}, 5, v0")
    a(f"v_and_b32 v{lp_}, 15, v0")
    a(f"v_bfe_u32 v{g1_}, v0, 4, 1")
    a(f"v_lshrrev_b32 v{rr_}, 2, v{lp_}")
    a(f"v_and_b32 v{cc_}, 3, v{lp_}")
    a(f"v_bfe_u32 v{t5}, v{q_}, 1, 3")
    a(f"v_xor_b32 v{t5}, v{hf_}, v{t5}")
    a(f"v_mul_u32_u24 v{t6}, 384, v{q_}")
    a(f"v_lshl_add_u32 v{t8}, v{q_}, 7, s48")
    a(f"v_add_u32 v{t8}, {KV0 * UNIT}, v{t8}")
    for i in range(4):
        a(f"v_xor_b32 v{t7}, {2 * i}, v{t5}")
        a(f"v_lshl_add_u32 v{KB + i}, v{t7}, 4, v{t6}")
        a(f"v_lshl_add_u32 v{XB + i}, v{t7}, 4, v{t8}")
    a(f"v_lshl_add_u32 v{t5}, v{hf_}, 2, v{rr_}")
    a(f"v_mul_u32_u24 v{t5}, 384, v{t5}")
    a(f"v_lshrrev_b32 v{t6}, 1, v{cc_}")
    a(f"v_lshl_add_u32 v{t6}, v{g1_}, 1, v{t6}")
    a(f"v_lshl_add_u32 v{t5}, v{t6}, 4, v{t5}")
    a(f"v_and_b32 v{t6}, 1, v{cc_}")
    a(f"v_lshl_add_u32 v{t5}, v{t6}, 3, v{t5}")
    a(f"v_lshrrev_b32 v{t6}, 1, v{rr_}")
    a(f"v_lshlrev_b32 v{t6}, 6, v{t6}")
    a(f"v_add_u32 v{VBE}, v{t5}, v{t6}")
    a(f"v_sub_u32 v{VBO}, v{t5}, v{t6}")
    a(f"v_lshl_add_u32 v{t5}, v{hf_}, 3, v{rr_}")
    a(f"v_mul_u32_u24 v{t5}, 384, v{t5}")
    a(f"v_and_b32 v{t7}, 1, v{cc_}")
    a(f"v_lshl_add_u32 v{t7}, v{g1_}, 1, v{t7}")
    a(f"v_lshl_add_u32 v{t5}, v{t7}, 4, v{t5}")
    a(f"v_lshrrev_b32 v{t7}, 1, v{cc_}")
    a(f"v_lshl_add_u32 v{t5}, v{t7}, 3, v{t5}")
    a(f"v_add_u32 v{t5}, {9 * UNIT}, v{t5}")
    a(f"v_add_u32 v{WBE}, v{t5}, v{t6}")
    a(f"v_sub_u32 v{WBO}, v{t5}, v{t6}")
    a(f"s_mul_i32 s7, s9, {UNIT}")
    a(f"s_add_u32 s7, s7, {RINGB}")
    a(f"v_lshl_add_u32 v{QRD}, v0, 4, s7")

    def wq_read(t, n):
        k2, T = divmod(n, 6)
        so = wslot(t) - 9 * UNIT
        base = WBE if T % 2 == 0 else WBO
        for rd in range(2):
            off = so + (16 * k2 + 4 * rd) * 384 + 64 * T
            L.issue(("w", t, n), f"ds_read_b64_tr_b16 {vr(AF + n * 4 + 2 * rd, 2)}, v{base} offset:{off}")

    def x_read(t):
        for k2 in range(2):
            L.issue(("x", t), f"ds_read_b128 {vr(BFR + (t % 2) * 8 + 4 * k2, 4)}, v{XB + 2 * (t % 2) + k2} offset:{xslot(t // 2) - KV0 * UNIT}")

    vneed([("w", 0), ("x", 0)])
    a("s_barrier")
    x_read(0)
    for n in range(12):
        wq_read(0, n)
    for t in range(20):
        L.drain()
        if t + 1 < 20:
            vneed([("w", t + 1), ("x", (t + 1) // 2)])
        a("s_barrier")
        if "st1" in FLAGS and t == int(os.environ.get("ST1", "0")):
            a("s_memrealtime s[52:53]")
        if t + 1 < 20:
            x_read(t + 1)
        for n in range(12):
            k2, T = divmod(n, 6)
            c = "0" if (t == 0 and k2 == 0) else vr(O + 16 * T, 16)
            a(f"v_mfma_f32_32x32x16_bf16 {vr(O + 16 * T, 16)}, {vr(AF + n * 4, 4)}, {vr(BFR + (t % 2) * 8 + 4 * k2, 4)}, {c}")
            if t + 1 < 20:
                wq_read(t + 1, n)
    a("s_nop 15")
    for T in range(6):
        for e in range(8):
            a(f"v_cvt_pk_bf16_f32 v{QF + 8 * T + e}, v{O + 16 * T + 2 * e}, v{O + 16 * T + 2 * e + 1}")
    a("s_cmp_lt_u32 s3, 4")
    a("s_cbranch_scc1 A_att")
    for ks in range(12):
        a(f"ds_write_b128 v{QRD}, {vr(QF + 4 * ks, 4)} offset:{ks * 1024}")
    a("s_load_dwordx2 s[40:41], s[0:1], 32")
    a("s_mul_i32 s7, s2, 30720")
    a("s_mul_i32 s35, s9, 10240")
    a("s_add_u32 s7, s7, s35")
    a("v_lshlrev_b32 v16, 7, v0")
    a("v_add_u32 v17, 8192, v16")
    a("v_cmp_gt_u32 vcc, 16, v0")
    a("s_waitcnt lgkmcnt(0)")
    srd(a, (40, 40), WO_BYTES)
    a("buffer_load_dword v18, v16, s[40:43], s7 offen")
    a("s_and_saveexec_b64 s[44:45], vcc")
    a("buffer_load_dword v19, v17, s[40:43], s7 offen")
    a("s_endpgm")

    a.label("A_att")
    a("s_setprio 2")
    a(f"s_mov_b32 s32, {f32hex(CSCALE)}")
    a(f"s_mov_b32 s46, {f32hex(8.0 / CSCALE)}")
    a("s_mov_b32 s33, 0")
    a("s_mov_b32 s49, 0")
    if "stamp" in FLAGS:
        if "st1" not in FLAGS:
            a("s_memrealtime s[52:53]")
        a("s_memtime s[58:59]")

    def adv():
        a(f"s_add_u32 s33, s33, {UNIT}")
        a(f"s_cmp_eq_u32 s33, {RINGB}")
        a(f"s_cselect_b32 s33, 0, s33")

    def k_addr():
        for i in range(4):
            a(f"v_add_u32 v{KA + i}, s33, v{KB + i}")
        adv()

    def v_addr():
        a(f"v_add_u32 v{VA}, s33, v{VBE}")
        a(f"v_add_u32 v{VA + 1}, s33, v{VBO}")
        adv()

    def k_read(ks, ring=6):
        L.issue(("k", ks), f"ds_read_b128 {vr(KF + 4 * (ks % ring), 4)}, v{KA + (ks & 3)} offset:{128 * (ks >> 2)}")

    def v_read(n):
        T, j = divmod(n, 2)
        for rd in range(2):
            off = (16 * j + 8 * rd) * 384 + 64 * T
            L.issue(("v", n), f"ds_read_b64_tr_b16 {vr(VF + 4 * (n % 6) + 2 * rd, 2)}, v{VA + (T & 1)} offset:{off}")

    def sm1_ops(S, tag):
        ops = []
        ops.append(f"v_max3_f32 v{T0}, v{S}, v{S + 1}, v{VM}")
        for k in range(2, 16, 2):
            ops.append(f"v_max3_f32 v{T0}, v{S + k}, v{S + k + 1}, v{T0}")
        ops.append(f"v_mov_b32 v{T1}, v{T0}")
        ops.append("s_nop 1")
        ops.append(f"v_permlane32_swap_b32 v{T0}, v{T1}")
        ops.append(f"v_max_f32 v{T0}, v{T0}, v{T1}")
        ops.append(f"v_sub_f32 v{T1}, v{T0}, v{VM}")
        ops.append(f"v_cmp_lt_f32 vcc, s46, v{T1}")
        ops.append(f"s_cbranch_vccnz A_rare1_{tag}")
        ops.append(f"A_back1_{tag}:")
        for k in range(16):
            ops.append(f"v_fma_f32 v{S + k}, v{S + k}, s32, -v{VMC}")
        return ops

    def sm2_ops(S):
        ops = []
        for k in range(16):
            ops.append(f"v_exp_f32 v{S + k}, v{S + k}")
        for e in range(8):
            ops.append(f"v_cvt_pk_bf16_f32 v{P + e}, v{S + 2 * e}, v{S + 2 * e + 1}")
        for k in range(0, 16, 2):
            ops.append(f"v_add_f32 v{S + k}, v{S + k}, v{S + k + 1}")
        for k in range(0, 16, 4):
            ops.append(f"v_add_f32 v{S + k}, v{S + k}, v{S + k + 2}")
        ops.append(f"v_add_f32 v{S}, v{S}, v{S + 4}")
        ops.append(f"v_add_f32 v{S + 8}, v{S + 8}, v{S + 12}")
        ops.append(f"v_add_f32 v{S}, v{S}, v{S + 8}")
        ops.append(f"v_add_f32 v{VL}, v{VL}, v{S}")
        return ops

    rare = []

    def emit(op):
        if op.endswith(":"):
            a.label(op[:-1])
        else:
            a(op)

    def take(lst, n):
        for _ in range(min(n, len(lst))):
            emit(lst.pop(0))

    def rare1(tag):
        rare.append(f"A_rare1_{tag}:")
        rare.append(f"    v_sub_f32 v{VAL}, v{VM}, v{T0}")
        rare.append(f"    v_mul_f32 v{VAL}, s32, v{VAL}")
        rare.append(f"    v_exp_f32 v{VAL}, v{VAL}")
        rare.append(f"    v_mov_b32 v{VM}, v{T0}")
        rare.append(f"    v_mul_f32 v{VMC}, s32, v{T0}")
        rare.append(f"    v_mul_f32 v{VL}, v{VL}, v{VAL}")
        rare.append(f"    s_mov_b32 s47, 1")
        rare.append(f"    s_branch A_back1_{tag}")

    def rare2(tag):
        a("s_cmp_lg_u32 s47, 0")
        a(f"s_cbranch_scc1 A_rare2_{tag}")
        a.label(f"A_back2_{tag}")
        rare.append(f"A_rare2_{tag}:")
        rare.append("    s_nop 15")
        for i in range(96):
            rare.append(f"    v_mul_f32 v{O + i}, v{O + i}, v{VAL}")
        rare.append("    s_mov_b32 s47, 0")
        rare.append(f"    s_branch A_back2_{tag}")

    EXPB = 3

    def cost(op):
        if op.endswith(":"):
            return 0
        if op.startswith("v_exp") or op.startswith("s_nop 1"):
            return 8
        return 4

    def fill(lst, budget):
        while lst and cost(lst[0]) <= budget:
            budget -= cost(lst[0])
            emit(lst.pop(0))

    GB = 24

    def iteration(cur, nxt, tag, qk=True, knext=True):
        rare2(tag)
        allf = sm2_ops(cur)[EXPB:]
        f = allf[:len(allf) - 16]
        sums = allf[len(allf) - 16:]
        for ks in range(12):
            b = GB
            if qk:
                if ks % 2 == 0:
                    L.need(("k", ks + 1))
                    b -= 4
                c = "0" if ks == 0 else vr(nxt, 16)
                a(f"v_mfma_f32_32x32x16_bf16 {vr(nxt, 16)}, {vr(KF + 4 * (ks % 6), 4)}, {vr(QF + 4 * ks, 4)}, {c}")
                if ks % 2 == 1 and ks + 5 < 12:
                    k_read(ks + 5)
                    k_read(ks + 6)
                    b -= 8
            if ks == 6:
                v_addr()
                b -= 20
            if ks == 8:
                L.drain()
                a("s_barrier")
                b -= 8
            if ks in (8, 9, 10):
                v_read(2 * (ks - 8))
                v_read(2 * (ks - 8) + 1)
                b -= 16
            fill(f, max(b, 8) if ks < 11 else 999)
        g = []
        if qk:
            g = sm1_ops(nxt, tag) + sm2_ops(nxt)[:EXPB]
            rare1(tag)
        for n in range(12):
            T, j = divmod(n, 2)
            b = GB
            if n % 2 == 0:
                L.need(("v", n + 1))
                b -= 4
            a(f"v_mfma_f32_32x32x16_bf16 {vr(O + 16 * T, 16)}, {vr(VF + 4 * (n % 6), 4)}, {vr(P + 4 * j, 4)}, {vr(O + 16 * T, 16)}")
            if n % 2 == 1 and n + 5 < 12:
                v_read(n + 5)
                v_read(n + 6)
                b -= 16
            if knext:
                if n == 6:
                    k_addr()
                    b -= 28
                if n == 8:
                    L.drain()
                    a("s_barrier")
                    b -= 8
                if n in (8, 9, 10):
                    k_read(2 * (n - 8))
                    k_read(2 * (n - 8) + 1)
                    b -= 8
            if n < 3:
                fill(sums, 24 if n < 2 else 999)
            else:
                fill(g, max(b + 8, 8) if n < 11 else 999)

    if "nocompute" in FLAGS:
        a("s_mov_b32 s34, 0")
        a.label("A_nc")
        a("s_barrier")
        a("s_add_u32 s34, s34, 1")
        a("s_cmp_lt_u32 s34, 128")
        a("s_cbranch_scc1 A_nc")
        a("s_branch A_fin")
    a.label("A_item")
    a.novalu = "novalu" in FLAGS
    a.nolds = "nolds" in FLAGS
    a.nomfma = "nomfma" in FLAGS
    for i in range(96):
        a(f"v_mov_b32 v{O + i}, 0")
    a(f"v_mov_b32 v{VM}, 0xff800000")
    a(f"v_mov_b32 v{VL}, 0")
    a("s_mov_b32 s47, 0")
    k_addr()
    L.drain()
    a("s_barrier")
    for ks in range(12):
        k_read(ks, ring=12)
    for ks in range(12):
        L.need(("k", ks))
        c = "0" if ks == 0 else vr(SA, 16)
        a(f"v_mfma_f32_32x32x16_bf16 {vr(SA, 16)}, {vr(KF + 4 * ks, 4)}, {vr(QF + 4 * ks, 4)}, {c}")
    k_addr()
    a("s_barrier")
    for ks in range(6):
        k_read(ks)
    a("s_nop 4")
    g = sm1_ops(SA, "p") + sm2_ops(SA)[:EXPB]
    rare1("p")
    take(g, 99)
    a("s_mov_b32 s34, 0")
    q0 = list(L.q)
    a.label("A_loop")
    iteration(SA, SB, "e")
    iteration(SB, SA, "o")
    assert L.q == q0, (L.q, q0)
    a("s_add_u32 s34, s34, 1")
    a("s_cmp_lt_u32 s34, 15")
    a("s_cbranch_scc1 A_loop")
    iteration(SA, SB, "e2", knext=False)
    iteration(SB, SA, "o2", qk=False, knext=False)
    for ks in range(12):
        L.issue(("q",), f"ds_read_b128 {vr(QF + 4 * ks, 4)}, v{QRD} offset:{ks * 1024}")
    a(f"v_mov_b32 v{T1}, v{VL}")
    a("s_nop 1")
    a(f"v_permlane32_swap_b32 v{VL}, v{T1}")
    a(f"v_add_f32 v{VL}, v{VL}, v{T1}")
    a(f"v_rcp_f32 v{T1}, v{VL}")
    a("s_mul_i32 s7, s4, 3")
    a("s_add_u32 s7, s7, s3")
    a("s_mul_i32 s7, s7, 384")
    a("s_mul_i32 s35, s5, 12")
    a("s_add_u32 s7, s7, s35")
    a("s_lshl_b32 s7, s7, 10")
    a(f"v_lshlrev_b32 v{T2}, 4, v0")
    a("s_nop 7")
    for T in range(6):
        for g in range(4):
            for e in range(2):
                r = O + 16 * T + 4 * g + 2 * e
                a(f"v_mul_f32 v{r}, v{r}, v{T1}")
                a(f"v_mul_f32 v{r + 1}, v{r + 1}, v{T1}")
        for g in range(4):
            for e in range(2):
                r = O + 16 * T + 4 * g + 2 * e
                a(f"v_cvt_pk_bf16_f32 v{KF + 8 * T + 2 * g + e}, v{r}, v{r + 1}")
        a("s_nop 1")
        for g in (0, 2):
            d = KF + 8 * T + 2 * g
            a(f"v_permlane32_swap_b32 v{d}, v{d + 2}")
            a(f"v_permlane32_swap_b32 v{d + 1}, v{d + 3}")
        for g in (0, 2):
            d = KF + 8 * T + 2 * g
            a(f"buffer_store_dwordx4 {vr(d, 4)}, v{T2}, s[24:27], s7 offen offset:{512 * g}{OST}")
        a("s_add_u32 s7, s7, 2048")
    a("s_add_u32 s4, s4, 8")
    a("s_add_u32 s49, s49, 1")
    a("s_cmp_lt_u32 s49, 2")
    a("s_cbranch_scc0 A_fin")
    a("s_waitcnt vmcnt(0)")
    a("s_branch A_item")
    a.label("A_fin")
    a.novalu = a.nolds = a.nomfma = False
    if "stamp" in FLAGS:
        a("s_memrealtime s[54:55]")
        a("s_memtime s[60:61]")
        a("s_waitcnt lgkmcnt(0)")
        a("s_sub_u32 s56, s60, s58")
        a("s_mov_b32 s26, 0x7fffffff")
        a("v_mov_b32 v4, s50")
        a("v_mov_b32 v5, s52")
        a("v_mov_b32 v6, s54")
        a("v_mov_b32 v7, s56")
        a("s_lshl_b32 s7, s2, 2")
        a("s_add_u32 s7, s7, s3")
        a("s_lshl_b32 s7, s7, 4")
        a("s_add_u32 s7, s7, 0x4000000")
        a("v_mov_b32 v8, 0")
        a("buffer_store_dwordx4 v[4:7], v8, s[24:27], s7 offen")
    a("s_endpgm")
    a.l.extend(rare)

    seq = []
    for r in range(2):
        seq.append(('K', r, 0))
        for i in range(31):
            seq.append(('K', r, i + 1))
            seq.append(('V', r, i))
        seq.append(('V', r, 31))
    N = len(seq)
    for who in "KV":
        a.label(f"A_load{who}")
        a("s_setprio 3")
        OF = 32
        for j in range(12):
            a(f"v_add_u32 v25, {64 * j}, v0")
            div24(a, 26, 27, 25, 28)
            if who == "K":
                a("v_bfe_u32 v28, v26, 1, 3")
            else:
                a("v_bfe_u32 v28, v26, 1, 1")
                a("v_lshlrev_b32 v28, 2, v28")
            a("v_xor_b32 v29, v27, v28")
            a("v_mul_u32_u24 v26, 384, v26")
            a(f"v_lshl_add_u32 v{OF + j}, v29, 4, v26")
        rs = "s[8:11]" if who == "K" else "s[12:15]"

        def issue(u):
            if u[2] == 0 and u[1] == 1:
                a(f"s_add_u32 s29, s6, {8 * 32 * 393216}")
            if "noload" not in FLAGS:
                for j in range(12):
                    a(f"s_add_u32 m0, s31, {j * 1024}")
                    a("s_nop 0")
                    a(f"buffer_load_dwordx4 v{OF + j}, {rs}, s29 offen {NT}lds")
            a("s_add_u32 s29, s29, 12288")

        def nextslot():
            a(f"s_add_u32 s31, s31, {UNIT}")
            a(f"s_cmp_eq_u32 s31, {RINGB}")
            a("s_cselect_b32 s31, 0, s31")

        if "coop" in FLAGS:
            a("s_lshr_b32 s7, s2, 3")
            if who == "K":
                a("s_and_b32 s35, s2, 7")
                a("s_mul_i32 s35, s35, 1536")
                a(f"s_mul_i32 s7, s7, {20 * 12288}")
                a("s_add_u32 s7, s7, s35")
                for j in range(4):
                    a(f"v_add_u32 v25, {64 * j}, v0")
                    if j == 3:
                        a("v_min_u32 v25, 239, v25")
                    a("v_mul_u32_u24 v26, 5462, v25")
                    a("v_lshrrev_b32 v26, 16, v26")
                    a("v_mul_u32_u24 v27, 12, v26")
                    a("v_sub_u32 v27, v25, v27")
                    a("v_mul_u32_u24 v26, 12288, v26")
                    a("v_lshl_add_u32 v26, v27, 7, v26")
                    a("buffer_load_dword v31, v26, s[16:19], s7 offen")
            else:
                a("s_mul_i32 s7, s7, 61440")
                a("v_lshlrev_b32 v26, 7, v0")
                for j in range(8):
                    if j == 7:
                        a("v_min_u32 v26, 61312, v26")
                    a("buffer_load_dword v31, v26, s[20:23], s7 offen")
                    a("v_add_u32 v26, 8192, v26")
        a("s_mov_b32 s29, s6")
        a("s_mov_b32 s31, 0")
        nini = 0
        for n in range(KV0):
            if seq[n][0] == who:
                issue(seq[n])
                nini += 12
            nextslot()
        if "coop" in FLAGS:
            a(f"s_waitcnt vmcnt({0 if 'noload' in FLAGS else nini})")
            a("s_barrier")
        PF = int(os.environ.get("PF", "0"))
        if PF:
            a("v_lshlrev_b32 v26, 7, v0")
            a("s_mov_b32 s35, s29")
            for i in range(PF * 96 // 64):
                a(f"buffer_load_dword v31, v26, {rs}, s35 offen")
                a("s_add_u32 s35, s35, 8192")
        PO = 48
        if who == "K":
            for j in range(12):
                a(f"v_add_u32 v25, {64 * j}, v0")
                div24(a, 26, 27, 25, 28)
                a("v_bfe_u32 v28, v26, 1, 1")
                a("v_lshlrev_b32 v28, 2, v28")
                a("v_xor_b32 v27, v27, v28")
                a("v_mul_u32_u24 v26, 12288, v26")
                a(f"v_lshl_add_u32 v{PO + j}, v27, 4, v26")
            a("s_mul_i32 s35, s5, 384")
        else:
            for j in range(24):
                a(f"v_add_u32 v25, {64 * (j % 12)}, v0")
                a("v_lshrrev_b32 v26, 3, v25")
                a("v_and_b32 v27, 7, v25")
                a("v_bfe_u32 v28, v26, 1, 3")
                a("v_xor_b32 v27, v27, v28")
                a("v_mul_u32_u24 v26, 1280, v26")
                a(f"v_lshl_add_u32 v{PO + j}, v27, 4, v26")
                if j >= 12:
                    a(f"v_add_u32 v{PO + j}, 983040, v{PO + j}")
            a("s_mul_i32 s35, s4, 122880")
        pq = []
        a("s_barrier")
        for t in range(20):
            needs = [("w", t + 1)] if who == "K" else [("x", (t + 1) // 2)]
            idx = max((i for i, t_ in enumerate(pq) if t_ in needs), default=-1)
            if idx >= 0:
                per = 12 if who == "K" else 24
                a(f"s_waitcnt vmcnt({per * (len(pq) - 1 - idx)})")
                del pq[:idx + 1]
            a("s_barrier")
            if who == "K" and t + 4 < 20:
                a("s_waitcnt vmcnt(48)")
                a(f"s_add_u32 s34, s35, {(t + 4) * 32 * 12288}")
                for j in range(12):
                    a(f"s_mov_b32 m0, {wslot(t + 4) + j * 1024}")
                    a("s_nop 0")
                    a(f"buffer_load_dwordx4 v{PO + j}, s[16:19], s34 offen lds")
                pq.append(("w", t + 4))
            if who == "V" and t % 2 == 1 and (t - 1) // 2 + XRN < 10:
                u = (t - 1) // 2 + XRN
                a("s_waitcnt vmcnt(36)")
                a(f"s_add_u32 s34, s35, {u * 128}")
                for j in range(24):
                    a(f"s_mov_b32 m0, {xslot(u) + j * 1024}")
                    a("s_nop 0")
                    a(f"buffer_load_dwordx4 v{PO + j}, s[20:23], s34 offen lds")
                pq.append(("x", u))
        for n in range(KV0, RING - 1):
            if seq[n][0] == who:
                issue(seq[n])
            nextslot()
        ev = []
        for n in range(N):
            upto = min(N - 1, n + RING - 2)
            w = None
            if seq[n][0] == who:
                w = sum(1 for m in range(n + 1, upto + 1) if seq[m][0] == who) * 12
                assert w <= 63
            m = n + RING - 1
            iss = seq[m] if (m < N and seq[m][0] == who) else None
            key = (w, None if iss is None else (iss[2] == 0 and iss[1] == 1))
            ev.append((key, iss))

        def step(e):
            (w, _), iss = e
            if w is not None:
                a(f"s_waitcnt vmcnt({w})")
            a("s_barrier")
            if iss is not None:
                issue(iss)
            nextslot()

        n = 0
        while n < N:
            k = n
            while k + 2 < N and ev[k + 2][0] == ev[k][0]:
                k += 1
            reps = (k + 2 - n) // 2
            if reps >= 4:
                lab = a.newlabel(f"A_l{who}")
                a("s_mov_b32 s34, 0")
                a.label(lab)
                step(ev[n])
                step(ev[n + 1])
                a("s_add_u32 s34, s34, 1")
                a(f"s_cmp_lt_u32 s34, {reps}")
                a(f"s_cbranch_scc1 {lab}")
                n += 2 * reps
            else:
                step(ev[n])
                n += 1
        a("s_endpgm")
    a.label("A_done")
    a("s_endpgm")


NCH = 8
OSTG = 16384
LDS2 = NCH * OSTG
POFF = 0x3000000
P_BYTES = 60 * 16 * 16384


def gen_oproj(a):
    K = "oproj_kernel"
    a.l.append(f".globl {K}\n.p2align 8\n.type {K},@function\n{K}:")
    a("s_cmp_ge_u32 s2, 240")
    a("s_cbranch_scc1 B_done")
    a("s_load_dwordx4 s[36:39], s[0:1], 32")
    a("s_load_dwordx4 s[40:43], s[0:1], 48")
    a("v_lshrrev_b32 v1, 6, v0")
    a("v_and_b32 v0, 63, v0")
    a("s_and_b32 s4, s2, 7")
    a("s_lshr_b32 s5, s2, 3")
    a("v_readfirstlane_b32 s3, v1")
    a("s_lshr_b32 s31, s4, 1")
    a("s_and_b32 s4, s4, 1")
    a("s_mul_i32 s4, s4, 30")
    a("s_add_u32 s5, s5, s4")
    a("s_mul_i32 s6, s5, 52")
    a("s_lshr_b32 s6, s6, 8")
    a("s_mul_i32 s7, s6, 5")
    a("s_sub_u32 s7, s5, s7")
    a("s_waitcnt lgkmcnt(0)")
    srd(a, (8, 36), WO_BYTES)
    srd(a, (12, 42), O_BYTES)
    srd(a, (16, 38), OUT_BYTES)
    a(f"s_add_u32 s20, s42, {POFF}")
    a("s_addc_u32 s21, s43, 0")
    a("s_and_b32 s21, s21, 0xffff")
    a(f"s_mov_b32 s22, {P_BYTES}")
    a("s_mov_b32 s23, 0x00020000")
    srd(a, (24, 40), 256)
    a("s_cmp_ge_u32 s3, 4")
    a("s_cbranch_scc1 B_load")
    ACC, AF, BF, PB, PB2 = 80, 16, 48, 144, 16
    RA, RB = 8, 12
    L = LdsQ(a)
    a("s_and_b32 s28, s3, 1")
    a("s_lshr_b32 s29, s3, 1")
    a("v_and_b32 v1, 31, v0")
    a("v_lshrrev_b32 v2, 5, v0")
    a("v_and_b32 v3, 15, v0")
    a("v_bfe_u32 v4, v0, 4, 1")
    a("v_lshrrev_b32 v5, 2, v3")
    a("v_and_b32 v6, 3, v3")
    a("v_lshl_add_u32 v25, v2, 3, v5")
    a("v_lshlrev_b32 v25, 8, v25")
    a("v_lshrrev_b32 v26, 1, v6")
    a("v_lshl_add_u32 v26, v4, 1, v26")
    a("v_lshl_add_u32 v25, v26, 4, v25")
    a("v_and_b32 v26, 1, v6")
    a("v_lshl_add_u32 v25, v26, 3, v25")
    a("s_lshl_b32 s30, s28, 1")
    for T in range(2):
        a(f"s_add_u32 s33, s30, {T}")
        a("v_xor_b32 v26, s33, v5")
        a(f"v_lshl_add_u32 v{RA + T}, v26, 6, v25")
    a("s_lshl_b32 s30, s29, 12")
    a("s_add_u32 s30, s30, 8192")
    a(f"v_lshl_add_u32 v{RB}, v0, 4, s30")
    a(f"v_add_u32 v{RA + 2}, {4 * OSTG}, v{RA}")
    a(f"v_add_u32 v{RA + 3}, {4 * OSTG}, v{RA + 1}")
    a(f"v_add_u32 v{RB + 1}, {4 * OSTG}, v{RB}")
    for i in range(64):
        a(f"v_mov_b32 v{ACC + i}, 0")

    def a_read(slot, buf, k2, T):
        hi = slot >= 4
        for rd in range(2):
            off = (slot % 4) * OSTG + (16 * k2 + 4 * rd) * 256
            L.issue(("a",), f"ds_read_b64_tr_b16 {vr(AF + buf * 16 + (k2 * 2 + T) * 4 + 2 * rd, 2)}, v{RA + T + 2 * hi} offset:{off}")

    def b_read(slot, buf, k2, tt):
        hi = slot >= 4
        off = (slot % 4) * OSTG + (tt * 2 + k2) * 1024
        L.issue(("a",), f"ds_read_b128 {vr(BF + buf * 16 + (k2 * 2 + tt) * 4, 4)}, v{RB + hi} offset:{off}")

    a("s_barrier")
    for k2 in range(2):
        for T in range(2):
            a_read(0, 0, k2, T)
            b_read(0, 0, k2, T)
    a("s_mov_b32 s34, 0")
    a.label("B_loop")
    for s_ in range(NCH):
        buf = s_ & 1
        L.drain()
        a("s_barrier")
        for k2 in range(2):
            for T in range(2):
                for tt in range(2):
                    acc = ACC + (T * 2 + tt) * 16
                    a(f"v_mfma_f32_32x32x16_bf16 {vr(acc, 16)}, {vr(AF + buf * 16 + (k2 * 2 + T) * 4, 4)}, {vr(BF + buf * 16 + (k2 * 2 + tt) * 4, 4)}, {vr(acc, 16)}")
                    if tt == 0:
                        a_read((s_ + 1) % NCH, buf ^ 1, k2, T)
                    else:
                        b_read((s_ + 1) % NCH, buf ^ 1, k2, T)
    a("s_add_u32 s34, s34, 1")
    a(f"s_cmp_lt_u32 s34, {48 // NCH}")
    a("s_cbranch_scc1 B_loop")
    a("s_lshl_b32 s30, s5, 4")
    a("s_lshl_b32 s33, s3, 2")
    a("s_add_u32 s30, s30, s33")
    a("v_lshlrev_b32 v9, 4, v0")
    a("s_nop 7")
    a("s_cmp_eq_u32 s3, s31")
    a("s_cbranch_scc1 B_own")
    a("s_add_u32 s33, s30, s31")
    a("s_lshl_b32 s33, s33, 14")
    for i in range(16):
        if i and i % 4 == 0:
            a("s_add_u32 s33, s33, 4096")
        a(f"buffer_store_dwordx4 {vr(ACC + 4 * i, 4)}, v9, s[20:23], s33 offen offset:{(i % 4) * 1024} sc1")
    a("s_waitcnt vmcnt(0)")
    a("s_barrier")
    a("s_endpgm")
    a.label("B_own")
    a("s_barrier")
    a("s_lshl_b32 s33, s5, 2")
    a("v_mov_b32 v10, s33")
    a("v_mov_b32 v11, 1")
    a("s_mov_b64 exec, 1")
    a("buffer_atomic_add v11, v10, s[24:27], 0 offen")
    a.label("B_poll")
    a("buffer_load_dword v11, v10, s[24:27], 0 offen sc1")
    a("s_waitcnt vmcnt(0)")
    a("v_readfirstlane_b32 s35, v11")
    a("s_cmp_ge_u32 s35, 4")
    a("s_cbranch_scc1 B_go")
    a("s_sleep 2")
    a("s_branch B_poll")
    a.label("B_go")
    a("s_mov_b64 exec, -1")
    for j in range(1, 4):
        a(f"s_add_u32 s33, s31, {j}")
        a("s_and_b32 s33, s33, 3")
        a("s_add_u32 s33, s33, s30")
        a("s_lshl_b32 s33, s33, 14")
        for i in range(16):
            if i and i % 4 == 0:
                a("s_add_u32 s33, s33, 4096")
            a(f"buffer_load_dwordx4 {vr((PB2 if j == 2 else PB) + 4 * i, 4)}, v9, s[20:23], s33 offen offset:{(i % 4) * 1024} sc1")
        if j >= 2:
            src = PB if j == 2 else PB2
            a("s_waitcnt vmcnt(16)")
            for i in range(64):
                a(f"v_add_f32 v{ACC + i}, v{ACC + i}, v{src + i}")
    a("s_waitcnt vmcnt(0)")
    for i in range(64):
        a(f"v_add_f32 v{ACC + i}, v{ACC + i}, v{PB + i}")
    for i in range(32):
        a(f"v_cvt_pk_bf16_f32 v{PB + i}, v{ACC + 2 * i}, v{ACC + 2 * i + 1}")
    a("s_lshl_b32 s33, s6, 7")
    a("s_lshl_b32 s35, s29, 6")
    a("s_add_u32 s33, s33, s35")
    a("v_add_u32 v9, s33, v1")
    a("v_mul_u32_u24 v9, 1280, v9")
    a("v_lshl_add_u32 v9, v2, 4, v9")
    a(f"v_add_u32 v10, {32 * 1280}, v9")
    a("s_lshl_b32 s33, s7, 8")
    a("s_lshl_b32 s35, s28, 7")
    a("s_add_u32 s33, s33, s35")
    for T in range(2):
        for tt in range(2):
            for g in (0, 2):
                d = PB + (T * 2 + tt) * 8 + 2 * g
                a(f"v_permlane32_swap_b32 v{d}, v{d + 2}")
                a(f"v_permlane32_swap_b32 v{d + 1}, v{d + 3}")
    for T in range(2):
        for tt in range(2):
            for g in (0, 2):
                d = PB + (T * 2 + tt) * 8 + 2 * g
                a(f"buffer_store_dwordx4 {vr(d, 4)}, v{9 + tt}, s[16:19], s33 offen offset:{64 * T + 16 * g}")
    a("s_endpgm")
    a.label("B_load")
    OFF = 8
    a("s_cmp_ge_u32 s3, 6")
    a("s_cbranch_scc1 B_loado")
    a("s_sub_u32 s28, s3, 4")
    a("s_lshl_b32 s29, s28, 8")
    for jj in range(4):
        a(f"v_add_u32 v25, s29, v0")
        if jj:
            a(f"v_add_u32 v25, {64 * jj}, v25")
        a("v_lshrrev_b32 v26, 4, v25")
        a("v_and_b32 v27, 15, v25")
        a("v_and_b32 v28, 3, v26")
        a("v_lshlrev_b32 v28, 2, v28")
        a("v_xor_b32 v27, v27, v28")
        a("v_mul_u32_u24 v26, 1280, v26")
        a(f"v_lshl_add_u32 v{OFF + jj}, v27, 4, v26")
    a("s_mul_i32 s33, s31, 1966080")
    a("s_lshl_b32 s30, s7, 8")
    a("s_add_u32 s33, s33, s30")
    a("s_mov_b32 s35, 40960")
    a("s_lshl_b32 s30, s28, 12")
    for i in range(4):
        a(f"s_mov_b32 s{44 + i}, s{8 + i}")
    a("s_branch B_lgo")
    a.label("B_loado")
    a("s_sub_u32 s28, s3, 6")
    a("s_lshl_b32 s29, s6, 2")
    a("s_lshl_b32 s30, s28, 1")
    a("s_add_u32 s29, s29, s30")
    a(f"s_mul_i32 s29, s29, {384 * 1024}")
    a(f"v_lshl_add_u32 v{OFF}, v0, 4, s29")
    a(f"v_add_u32 v{OFF + 1}, 1024, v{OFF}")
    a(f"v_add_u32 v{OFF + 2}, {384 * 1024}, v{OFF}")
    a(f"v_add_u32 v{OFF + 3}, {384 * 1024 + 1024}, v{OFF}")
    a("s_mul_i32 s33, s31, 98304")
    a("s_mov_b32 s35, 2048")
    a("s_lshl_b32 s30, s28, 12")
    a("s_add_u32 s30, s30, 8192")
    for i in range(4):
        a(f"s_mov_b32 s{44 + i}, s{12 + i}")
    a.label("B_lgo")

    def issue(slot):
        for jj in range(4):
            a(f"s_add_u32 m0, s30, {slot * OSTG + jj * 1024}")
            a("s_nop 0")
            a(f"buffer_load_dwordx4 v{OFF + jj}, s[44:47], s33 offen lds")
        a("s_add_u32 s33, s33, s35")

    for s_ in range(NCH):
        issue(s_)
    a(f"s_waitcnt vmcnt({4 * (NCH - 1)})")
    a("s_barrier")
    a("s_mov_b32 s34, 0")
    a.label("B_lloop")
    for s_ in range(NCH):
        a(f"s_waitcnt vmcnt({4 * (NCH - 2)})")
        a("s_barrier")
        issue(s_)
    a("s_add_u32 s34, s34, 1")
    a(f"s_cmp_lt_u32 s34, {48 // NCH}")
    a("s_cbranch_scc1 B_lloop")
    a.label("B_done")
    a("s_endpgm")


def descriptor(name, vgpr):
    return f""".p2align 6
.amdhsa_kernel {name}
  .amdhsa_next_free_vgpr {vgpr}
  .amdhsa_next_free_sgpr 64
  .amdhsa_accum_offset {vgpr}
  .amdhsa_group_segment_fixed_size 0
  .amdhsa_kernarg_size 64
  .amdhsa_user_sgpr_count 2
  .amdhsa_user_sgpr_kernarg_segment_ptr 1
  .amdhsa_system_sgpr_workgroup_id_x 1
.end_amdhsa_kernel
"""


def main():
    ref = open(f"cdna_kernels/{NAME}.s.ref").read().splitlines()
    head = [l for l in ref if l.startswith(";") and "@launch" not in l and "Override" not in l and "grid=ceil" not in l]
    a = Asm()
    out = "\n".join(head) + "\n"
    out += f"; @launch kernel=attn_kernel grid=(256,1,1) block=(512,1,1) lds={LDS1}\n"
    out += f"; @launch kernel=oproj_kernel grid=(240,1,1) block=(512,1,1) lds={LDS2}\n"
    out += '.amdgcn_target "amdgcn-amd-amdhsa--gfx950"\n.text\n'
    gen_attn(a)
    gen_oproj(a)
    out += a.text()
    out += '.section .rodata,"a"\n'
    out += descriptor("attn_kernel", 256)
    out += descriptor("oproj_kernel", 256)
    dst = sys.argv[1] if len(sys.argv) > 1 else f"cdna_kernels/{NAME}.s"
    open(dst, "w").write(out)


if __name__ == "__main__":
    main()
```
